```python
import torch

def _softmax(x, axis=-1):
    return torch.softmax(x, dim=axis)

def _gelu(x):
    return torch.nn.functional.gelu(x, approximate='tanh')

def _silu(x):
    return torch.nn.functional.silu(x)

def _sigmoid(x):
    return torch.sigmoid(x)

def _layernorm(x, axis=-1, eps=1e-05):
    m = x.mean(dim=axis, keepdim=True)
    v = x.var(dim=axis, keepdim=True, unbiased=False)
    return (x - m) / torch.sqrt(v + eps)

def _scatter_add(tgt, idx, src, axis=0):
    return tgt.clone().index_add_(axis, idx, src)

def _segment_sum(src, seg, n):
    out = torch.zeros((n,) + src.shape[1:], dtype=src.dtype)
    return out.index_add_(0, seg, src)

def _pad(x, pw):
    flat = tuple((v for pair in reversed(pw) for v in pair))
    return torch.nn.functional.pad(x, flat)
kernel_name = 'gated_mix__memory_aug_recurrent_mem_tr__dense_activation_gelu__prompt'

def setup_inputs():

    _w = lambda a: (lambda t: t.to(torch.bfloat16) if t.is_floating_point() else t)(torch.as_tensor(a))

    def _A_setup():
        B, S, Dm = (1, 2048, 512)
        H, Dh = (32, 128)
        M, seg = (8, 32)
        seg = min(seg, S)
        S = S // seg * seg
        return {'x': _w((lambda *s: torch.randn(*s, dtype=torch.bfloat16) * 0.05)(B, S, Dm)), 'mem0': _w((lambda *s: torch.randn(*s, dtype=torch.bfloat16) * 0.4)(B, M, Dm)), 'Wq': _w((lambda *s: torch.randn(*s, dtype=torch.bfloat16) * 6.4)(Dm, H, Dh) * Dm ** (-0.5)), 'Wk': _w((lambda *s: torch.randn(*s, dtype=torch.bfloat16) * 6.4)(Dm, H, Dh) * Dm ** (-0.5)), 'Wv': _w((lambda *s: torch.randn(*s, dtype=torch.bfloat16) * 0.4)(Dm, H, Dh) * Dm ** (-0.5)), 'Wo': _w((lambda *s: torch.randn(*s, dtype=torch.bfloat16) * 0.4)(H, Dh, Dm) * (H * Dh) ** (-0.5)), 'seg_len': seg}
    _A_in = _A_setup()

    def _B_setup():
        B, S, D, F = (1, 2048, 512, 1376)
        return {'x': _w((lambda *s: torch.randn(*s, dtype=torch.bfloat16) * 0.05)(B, S, D)), 'w1': _w((lambda *s: torch.randn(*s, dtype=torch.bfloat16) * 3.2)(D, F) * D ** (-0.5)), 'b1': _w((lambda *s: torch.randn(*s, dtype=torch.bfloat16) * 3.2)(F) * 0.01), 'w2': _w((lambda *s: torch.randn(*s, dtype=torch.bfloat16) * 0.2)(F, D) * F ** (-0.5)), 'b2': _w((lambda *s: torch.randn(*s, dtype=torch.bfloat16) * 0.4)(D) * 0.01)}
    _B_in = _B_setup()
    return {'A_x': _A_in['x'], 'A_mem0': _A_in['mem0'], 'A_Wq': _A_in['Wq'], 'A_Wk': _A_in['Wk'], 'A_Wv': _A_in['Wv'], 'A_Wo': _A_in['Wo'], 'A_seg_len': _A_in['seg_len'], 'B_x': _B_in['x'], 'B_w1': _B_in['w1'], 'B_b1': _B_in['b1'], 'B_w2': _B_in['w2'], 'B_b2': _B_in['b2'], 'gate_w': _w((lambda *s: torch.randn(*s, dtype=torch.bfloat16) * 0.05)(512) * 16.0)}

def reference(A_x, A_mem0, A_Wq, A_Wk, A_Wv, A_Wo, A_seg_len, B_x, B_w1, B_b1, B_w2, B_b2, gate_w):

    def _A_ref(x, mem0, Wq, Wk, Wv, Wo, seg_len):
        B, S, Dm = x.shape
        H, Dh = (Wq.shape[1], Wq.shape[2])
        M = mem0.shape[1]
        scale = Dh ** (-0.5)
        n_seg = S // seg_len
        L = M + seg_len
        idx = torch.arange(L)
        mask = (idx[:, None] < M) | (idx[:, None] >= idx[None, :])
        mem = mem0
        outs = []
        for s in range(n_seg):
            xs = x[:, s * seg_len:(s + 1) * seg_len, :].clone()
            h = torch.concatenate([mem, xs], axis=1)
            q = torch.einsum('btd,dhe->bhte', h, Wq)
            k = torch.einsum('btd,dhe->bhte', h, Wk)
            v = torch.einsum('btd,dhe->bhte', h, Wv)
            scores = torch.einsum('bhqe,bhke->bhqk', q, k) * scale
            scores = torch.where(mask[None, None], scores, -1000000000.0)
            p = _softmax(scores, axis=-1)
            o = torch.einsum('bhqk,bhke->bhqe', p, v)
            o = torch.einsum('bhte,hed->btd', o, Wo)
            mem = o[:, :M, :].clone()
            outs.append(o[:, M:, :])
        return torch.concatenate(outs, axis=1)

    def _B_ref(x, w1, b1, w2, b2):
        h = torch.einsum('bsd,df->bsf', x, w1) + b1
        h = _gelu(h)
        return torch.einsum('bsf,fd->bsd', h, w2) + b2
    x = A_x
    g = _sigmoid((x * gate_w).sum(-1, keepdims=True))
    a = _A_ref(x, A_mem0, A_Wq, A_Wk, A_Wv, A_Wo, A_seg_len)
    b = _B_ref(x, B_w1, B_b1, B_w2, B_b2)
    return g * a + (1 - g) * b
```

```python
import re


class Asm:
    def __init__(self):
        self.lines = []
        self.uid = 0

    def __call__(self, s):
        for ln in s.split("\n"):
            ln = ln.strip()
            if ln:
                self.lines.append("    " + ln)

    def csel(self, dst, x, y):
        self("s_mov_b32 s%d, 0x%x" % (dst, y))
        self("s_cselect_b32 s%d, 0x%x, s%d" % (dst, x, dst))

    def label(self, name):
        self.lines.append(name + ":")

    def raw(self, s):
        self.lines.append(s)

    def c(self, s):
        self.lines.append("    ; " + s)

    def newlabel(self, base):
        self.uid += 1
        return "%s_%d" % (base, self.uid)

    def text(self):
        return "\n".join(self.lines) + "\n"


def vr(a, n=1):
    return "v%d" % a if n == 1 else "v[%d:%d]" % (a, a + n - 1)


def ar(a, n=1):
    return "a%d" % a if n == 1 else "a[%d:%d]" % (a, a + n - 1)


def sr(a, n=1):
    return "s%d" % a if n == 1 else "s[%d:%d]" % (a, a + n - 1)


def merge(main, fill, pattern):
    out = []
    fi = 0
    for i, m in enumerate(main):
        out.append(m)
        k = pattern if isinstance(pattern, int) else (pattern[i] if i < len(pattern) else 0)
        for _ in range(k):
            if fi < len(fill):
                out.append(fill[fi])
                fi += 1
    out += fill[fi:]
    return out


_REG = re.compile(r"^(-?\|?)([vas])(?:(\d+)|\[(\d+):(\d+)\])\|?$")
TRANS = ("v_exp_f32", "v_log_f32", "v_rcp_f32", "v_rsq_f32", "v_sqrt_f32", "v_sin_f32", "v_cos_f32")


def regs(tok):
    tok = tok.strip()
    if tok in ("vcc", "exec", "m0", "scc"):
        return {(tok, 0)}
    if tok in ("vcc_lo", "vcc_hi"):
        return {("vcc", 0)}
    if tok in ("exec_lo", "exec_hi"):
        return {("exec", 0)}
    m = re.match(r"^(?:abs|neg)\((.*)\)$", tok)
    if m:
        tok = m.group(1)
    m = _REG.match(tok)
    if not m:
        return set()
    f = m.group(2)
    if m.group(3) is not None:
        return {(f, int(m.group(3)))}
    return {(f, i) for i in range(int(m.group(4)), int(m.group(5)) + 1)}


class Ins:
    __slots__ = ("text", "mn", "ops", "mods", "kind", "rd", "wr", "passes", "A", "B", "C", "D", "dpp",
                 "states", "line", "nocheck", "lds", "data", "isload", "isstore", "target")


def parse(line, lineno):
    body = line.split(";")[0].strip()
    if not body or body.endswith(":") or body.startswith("."):
        return None
    I = Ins()
    I.text = body
    I.line = lineno
    I.nocheck = "nocheck" in line
    parts = body.split(None, 1)
    I.mn = parts[0]
    rest = parts[1] if len(parts) > 1 else ""
    toks = [t.strip() for t in rest.split(",")] if rest else []
    mods = []
    if toks:
        last = toks[-1].split()
        toks[-1] = last[0]
        mods = last[1:]
    I.ops = toks
    I.mods = mods
    I.states = 1
    I.rd = set()
    I.wr = set()
    I.passes = 0
    I.A = I.B = I.C = I.D = set()
    I.dpp = False
    I.lds = False
    I.data = set()
    I.isload = I.isstore = False
    I.target = None
    mn = I.mn
    R = [regs(t) for t in toks]
    if mn.startswith("v_mfma") or mn.startswith("v_smfmac"):
        I.kind = "mfma"
        I.passes = 8 if "32x32" in mn else 4
        I.D = R[0]
        I.A = R[1]
        I.B = R[2]
        if mn.startswith("v_smfmac"):
            I.C = R[0]
            I.A = R[1] | R[3]
        else:
            I.C = R[3]
        I.rd = I.A | I.B | I.C
        I.wr = I.D
    elif mn.startswith("v_"):
        I.kind = "valu"
        I.dpp = ("_dpp" in mn) or any(m.startswith(("row_", "quad_perm", "wave_")) for m in mods)
        if mn.startswith("v_cmp"):
            I.wr = R[0]
            for r in R[1:]:
                I.rd |= r
            if mn.startswith("v_cmpx"):
                I.wr = I.wr | {("exec", 0)}
        elif mn.startswith("v_permlane") and "swap" in mn:
            I.wr = R[0] | R[1]
            I.rd = R[0] | R[1]
        elif mn.startswith(("v_add_co", "v_sub_co", "v_addc_co", "v_subb_co")):
            I.wr = R[0] | R[1]
            for r in R[2:]:
                I.rd |= r
        elif mn == "v_nop":
            pass
        else:
            I.wr = R[0]
            for r in R[1:]:
                I.rd |= r
            if mn.startswith(("v_fmac", "v_pk_fmac", "v_dot2c", "v_writelane")) or I.dpp:
                I.rd |= R[0]
            if mn.startswith("v_cndmask") and len(toks) == 3:
                I.rd |= {("vcc", 0)}
    elif mn.startswith("ds_"):
        I.kind = "ds"
        if "read" in mn or "bpermute" in mn or "swizzle" in mn:
            I.wr = R[0]
            for r in R[1:]:
                I.rd |= r
            I.isload = True
        else:
            for r in R:
                I.rd |= r
    elif mn.startswith(("buffer_", "global_")):
        I.kind = "vmem"
        I.lds = "lds" in mods or "_lds_" in mn
        if mn.startswith(("buffer_wbl2", "buffer_inv")):
            pass
        elif I.lds:
            for r in R:
                I.rd |= r
            I.rd |= {("m0", 0)}
        elif "load" in mn:
            I.wr = R[0]
            for r in R[1:]:
                I.rd |= r
            I.isload = True
        elif "atomic" in mn:
            for r in R:
                I.rd |= r
            if "sc0" in mods:
                I.wr = R[0]
                I.isload = True
        else:
            for r in R:
                I.rd |= r
            I.isstore = True
            I.data = R[0] if mn.startswith("buffer_") else R[1]
    elif mn.startswith("s_"):
        I.kind = "salu"
        if mn == "s_nop":
            I.states = int(toks[0], 0) + 1
        elif mn.startswith(("s_load", "s_memtime", "s_memrealtime", "s_buffer_load")):
            I.kind = "smem"
            I.wr = R[0]
            for r in R[1:]:
                I.rd |= r
            I.isload = True
        elif mn.startswith(("s_cbranch", "s_branch")):
            I.target = toks[0]
        elif mn.startswith(("s_cmp", "s_waitcnt", "s_barrier", "s_endpgm", "s_sleep", "s_setprio", "s_bitcmp")):
            for r in R:
                I.rd |= r
        else:
            I.wr = R[0] if R else set()
            for r in R[1:]:
                I.rd |= r
            if "saveexec" in mn:
                I.wr = I.wr | {("exec", 0)}
    else:
        raise ValueError("cannot parse: " + line)
    return I


def _vg(s):
    return {r for r in s if r[0] in "va"}


def _sg(s):
    return {r for r in s if r[0] == "s" or r[0] == "vcc"}


def need(P, C):
    n = 0
    if P.kind == "valu":
        w = _vg(P.wr)
        if C.kind == "mfma" and w & C.rd:
            n = max(n, 2)
        if C.kind == "valu":
            if (C.dpp or C.mn.startswith("v_permlane")) and w & C.rd:
                n = max(n, 2)
            if C.mn.startswith(("v_readlane", "v_readfirstlane")) and w & C.rd:
                n = max(n, 1)
            if P.mn.startswith(TRANS) and not C.mn.startswith(TRANS) and w & C.rd:
                n = max(n, 1)
            if _sg(P.wr) & C.rd:
                n = max(n, 2)
                if C.mn.startswith(("v_readlane", "v_writelane")):
                    n = max(n, 4)
        if P.mn.startswith(TRANS) and C.kind in ("ds", "vmem") and w & C.rd:
            n = max(n, 1)
        if C.kind == "vmem" and _sg(P.wr) & C.rd:
            n = max(n, 5)
        if C.kind in ("salu", "smem") and _sg(P.wr) & C.rd and not C.mn.startswith("s_cbranch"):
            n = max(n, 1)
        if ("exec", 0) in P.wr and (C.kind == "mfma" or C.dpp or C.mn.startswith(("v_permlane", "v_read"))):
            n = max(n, 5)
    if P.kind == "mfma":
        big = 8 if P.passes == 4 else 12
        if C.kind == "mfma":
            if P.D & (C.A | C.B):
                n = max(n, big)
            if P.D & C.C:
                if not (P.D == C.C and P.passes == C.passes):
                    n = max(n, big - 2)
            if P.D & C.D and not (P.D == C.C):
                n = max(n, big)
        elif C.kind in ("valu", "ds", "vmem"):
            if P.D & (C.rd | C.wr):
                n = max(n, big)
            if C.kind == "valu" and P.C & C.wr:
                n = max(n, 3 if P.passes == 4 else 7)
    if P.kind == "vmem" and P.isstore and len(P.data) >= 3:
        if P.data & C.wr:
            n = max(n, 2 if C.kind in ("valu", "mfma") else 1)
    if P.kind == "salu" and ("m0", 0) in P.wr and C.kind == "vmem" and C.lds:
        n = max(n, 1)
    return n


def check_seq(seq, errs, start=0):
    for i in range(start, len(seq)):
        C = seq[i]
        if C.nocheck:
            continue
        d = 0
        for j in range(i - 1, max(-1, i - 24), -1):
            P = seq[j]
            nd = need(P, C)
            if nd > d:
                errs.add("HAZARD need %d have %d: L%d '%s' -> L%d '%s'" % (nd, d, P.line, P.text, C.line, C.text))
            d += P.states
            if d >= 20:
                break


def _wait_parse(I):
    vm = lg = None
    t = I.text
    m = re.search(r"vmcnt\((\d+)\)", t)
    if m:
        vm = int(m.group(1))
    m = re.search(r"lgkmcnt\((\d+)\)", t)
    if m:
        lg = int(m.group(1))
    return vm, lg


def check_waits(ins, labels, errs):
    def walk(lo, hi, vq, lq, depth):
        i = lo
        while i < hi:
            I = ins[i]
            if I.mn == "s_waitcnt":
                vm, lg = _wait_parse(I)
                if vm is not None:
                    while len(vq) > vm:
                        vq.pop(0)
                if lg is not None:
                    if lg == 0:
                        lq.clear()
                    else:
                        if any(x[1] for x in lq):
                            if not I.nocheck:
                                errs.add("WAIT counted lgkmcnt with SMEM outstanding L%d" % I.line)
                        while len(lq) > lg:
                            lq.pop(0)
            elif I.mn == "s_endpgm":
                vq.clear()
                lq.clear()
            else:
                if not I.nocheck:
                    touched = I.rd | I.wr
                    for q in (vq, lq):
                        for ent in q:
                            if ent[0] & touched:
                                errs.add("WAIT L%d '%s' touches pending load L%d '%s'" % (I.line, I.text, ent[2].line, ent[2].text))
                if I.kind == "vmem":
                    vq.append((set(I.wr) if I.isload else set(), False, I))
                    if len(vq) > 63:
                        errs.add("WAIT vmcnt overflow at L%d" % I.line)
                        vq.pop(0)
                elif I.kind == "ds":
                    lq.append((set(I.wr) if I.isload else set(), False, I))
                elif I.kind == "smem":
                    lq.append((set(I.wr), True, I))
                if I.target is not None and I.target in labels and labels[I.target] <= i and depth < 2:
                    walk(labels[I.target], i, vq, lq, depth + 1)
                if I.mn == "s_branch" and depth == 0:
                    vq.clear()
                    lq.clear()
            i += 1
    walk(0, len(ins), [], [], 0)


def check(text):
    ins = []
    labels = {}
    for n, line in enumerate(text.split("\n"), 1):
        s = line.split(";")[0].strip()
        if s.endswith(":"):
            labels[s[:-1]] = len(ins)
            continue
        if s.startswith(".") or not s:
            continue
        I = parse(line, n)
        if I:
            ins.append(I)
    errs = set()
    check_seq(ins, errs)
    for i, I in enumerate(ins):
        if I.target is not None and I.target in labels:
            t = labels[I.target]
            pre = ins[max(0, i - 24):i + 1]
            seq = pre + ins[t:t + 24]
            check_seq(seq, errs, start=len(pre))
    check_waits(ins, labels, errs)
    return sorted(errs)


def autopad(lines, report=None):
    out = []
    hist = []
    for line in lines:
        s = line.split(";")[0].strip()
        if not s or s.endswith(":") or s.startswith("."):
            out.append(line)
            continue
        I = parse(line, 0)
        d = 0
        short = 0
        for P in reversed(hist[-24:]):
            nd = need(P, I)
            if nd - d > short:
                short = nd - d
            d += P.states
            if d >= 20:
                break
        if short > 0 and not I.nocheck:
            if report is not None:
                report.append((short, s))
            while short > 0:
                k = min(short, 16)
                nop = "    s_nop %d" % (k - 1)
                out.append(nop)
                hist.append(parse(nop, 0))
                short -= k
        out.append(line)
        hist.append(I)
    return out
```

```python
import struct
from asmlib import *
from layout import *
from p1 import srd, srd_fin

f2u = lambda f: struct.unpack("<I", struct.pack("<f", f))[0]
CSCALE = (128.0 ** -0.5) * 1.4426950408889634

S_WQ, S_WK, S_WV, S_WO, S_WS, S_M0, S_DBG = 4, 8, 12, 16, 20, 24, 28
sH, sW, sS, sSEL0, sSEL1 = 32, 33, 34, 35, 36
sT0, sT1, sT2, sSPIN = 37, 38, 39, 40
sP0, sP1, sP2, sP3 = 41, 42, 43, 44
sSLOT, sSLOTN, sSLOTR = 45, 46, 47
sKX, sVX0, sVX1, sTOUCH, sPUBK, sPUBV = 48, 49, 50, 51, 52, 53
sC, sPH, sNOT1, sM0KX, sFE = 54, 55, 56, 57, 58
sSTAMP = 66
vJUNK, vIDX, vMEMG, vMEML, vLIN, vWO, vQW, vTR, vOW, vPST, vPLD, vMST, vKXG, vVXG, vPUB, vTCH = range(16)
M = 16
AQ, AK, AV = 48, 56, 64
KXF = 72
QF = 104
VXF = 120
KF, PX, PM = 72, 88, 92
vMC, vZ = 94, 95
KPUB, VMF = 96, 100
S0, S1, SM = 48, 52, 56
T0, T1, T2, T3 = 60, 61, 62, 63
OACC, OF = 48, 56
WACC = [64, 72, 80, 120]
WLAND = [16, 24, 32, 40, 104, 112]
G2 = 104
WV0 = 128
L_WO = 0
L_HI = 131072
O_KX, O_MEM, O_Q, O_K, O_O = 0, 8192, 16384, 18432, 20480
LDS_BYTES = L_HI + 22528


def wq(tau, t):
    return ar((t * 2 + tau) * 8, 8)


def wk(tau, t):
    return ar(128 + (t * 2 + tau) * 8, 8)


def wv(tau, t):
    return vr(WV0 + (t * 2 + tau) * 8, 8)


def dl_m(m):
    return 32 * (m >> 2) + 8 * (m & 1) + 2 * ((m >> 1) & 1)


def smf(d, mfrag, b):
    return "v_smfmac_f32_16x16x64_bf16 %s, %s, %s, v%d" % (vr(d, 4), vr(mfrag, 4), b, vIDX)


def stamp(a, on, k):
    if on:
        a("s_memtime %s" % sr(sSTAMP + 2 * k, 2) + " ; nocheck")


def chain_setup(a, sR, sc):
    a.c("---- chain set-up ----")
    for s, ka in ((S_WQ, KA_WQ), (S_WK, KA_WK), (S_WV, KA_WV), (S_WO, KA_WO), (S_WS, KA_WS), (S_M0, KA_MEM0), (S_DBG, KA_DBG)):
        srd(a, s, ka, 0)
    a("s_mov_b32 s%d, s%d" % (sH, sR))
    a("v_lshrrev_b32 v16, 6, v0")
    a("v_and_b32 v17, 63, v0")
    a("v_readfirstlane_b32 s%d, v16" % sW)
    a("v_and_b32 v18, 15, v17")
    a("v_lshrrev_b32 v19, 4, v17")
    a("s_mov_b32 s%d, 0x%x" % (sSEL0, SEL_LO))
    a("s_mov_b32 s%d, 0x%x" % (sSEL1, SEL_HI))
    a("s_waitcnt lgkmcnt(0)")
    for s in (S_WQ, S_WK, S_WV, S_WO):
        srd_fin(a, s, 4 * MB)
    srd_fin(a, S_WS, WS_BYTES)
    srd_fin(a, S_M0, 8192)
    srd_fin(a, S_DBG, 256)
    l, c, g = 17, 18, 19
    a("v_lshrrev_b32 v20, 1, v%d" % g)
    a("v_and_b32 v21, 1, v%d" % g)
    a("v_lshlrev_b32 v22, 2, v21")
    a("v_lshl_add_u32 v22, v20, 4, v22")
    a("s_lshl_b32 s%d, s%d, 8" % (sT0, sH))
    a("s_lshl_b32 s%d, s%d, 6" % (sT1, sW))
    a("s_add_u32 s%d, s%d, s%d" % (sT0, sT0, sT1))
    a("v_lshl_add_u32 v23, v%d, 2, s%d" % (c, sT0))
    a("v_lshl_add_u32 v24, v22, 13, v23")
    a("v_add_u32 v25, 8192, v24")
    a("s_lshl_b32 s%d, s%d, 17" % (sT0, sH))
    a("s_lshl_b32 s%d, s%d, 8" % (sT1, sW))
    a("s_add_u32 s%d, s%d, s%d" % (sT0, sT0, sT1))
    a("v_lshl_add_u32 v23, v%d, 2, s%d" % (c, sT0))
    a("v_lshl_add_u32 v26, v22, 10, v23")
    LAND = [32, 64]
    TMP = 96
    batches = []
    for mat in range(3):
        for t0 in range(0, 8, 2):
            batches.append((mat, t0))
    for p in range(4):
        batches.append((3, p))

    def issue(bi):
        mat, x = batches[bi]
        base = LAND[bi & 1]
        for tt in range(2):
            for m in range(8):
                r = base + tt * 16 + 2 * m
                if tt == 1 and m == 7:
                    a("s_waitcnt vmcnt(61)")
                if mat < 3:
                    row = 64 * (x + tt) + dl_m(m)
                    a("s_mov_b32 s%d, 0x%x" % (sT0, row * 8192))
                    s_ = (S_WQ, S_WK, S_WV)[mat]
                    a("buffer_load_dword v%d, v24, %s, s%d offen" % (r, sr(s_, 4), sT0))
                    a("buffer_load_dword v%d, v25, %s, s%d offen" % (r + 1, sr(s_, 4), sT0))
                else:
                    row = 64 * tt + dl_m(m)
                    a("s_mov_b32 s%d, 0x%x" % (sT0, row * 1024))
                    a("buffer_load_dword v%d, v26, %s, s%d offen offset:%d" % (r, sr(S_WO, 4), sT0, x * 64))
                    a("buffer_load_dword v%d, v26, %s, s%d offen offset:%d" % (r + 1, sr(S_WO, 4), sT0, x * 64 + 1024))

    def consume(bi):
        mat, x = batches[bi]
        base = LAND[bi & 1]
        for tt in range(2):
            for tau in range(2):
                sel = sSEL1 if tau else sSEL0
                for m in range(8):
                    r = base + tt * 16 + 2 * m
                    dst = (WV0 + ((x + tt) * 2 + tau) * 8 + m) if mat == 2 else TMP + tau * 8 + m
                    a("v_perm_b32 v%d, v%d, v%d, s%d" % (dst, r + 1, r, sel))
                if mat < 2:
                    for m in range(8):
                        a("v_accvgpr_write_b32 a%d, v%d" % (mat * 128 + ((x + tt) * 2 + tau) * 8 + m, TMP + tau * 8 + m))
                elif mat == 3:
                    n = 4 * x + 2 * tt + tau
                    a("ds_write_b128 v%d, %s offset:%d" % (vWO, vr(TMP + tau * 8, 4), n * 2048))
                    a("ds_write_b128 v%d, %s offset:%d" % (vWO, vr(TMP + tau * 8 + 4, 4), n * 2048 + 1024))
            if mat == 3:
                a("s_waitcnt lgkmcnt(0)")

    issue(0)
    a("v_cmp_gt_u32 vcc, 8, v%d" % c)
    a("v_mov_b32 v27, 0xeeee")
    a("v_mov_b32 v28, 0x4444")
    a("v_cndmask_b32 v%d, v27, v28, vcc" % vIDX)
    a("v_lshlrev_b32 v27, 4, v%d" % l)
    a("s_lshl_b32 s%d, s%d, 11" % (sT0, sW))
    a("v_add_u32 v28, s%d, v27" % sT0)
    a("v_add_u32 v%d, 0x%x, v28" % (vMEMG, MEMRING))
    a("v_add_u32 v%d, 0x%x, v28" % (vMEML, L_HI + O_MEM))
    a("v_add_u32 v%d, 0x%x, v27" % (vLIN, L_HI))
    a("s_lshl_b32 s%d, s%d, 15" % (sT1, sW))
    a("v_add_u32 v%d, s%d, v27" % (vWO, sT1))
    a("s_lshl_b32 s%d, s%d, 13" % (sT1, sH))
    a("v_add_u32 v%d, s%d, v28" % (vKXG, sT1))
    a("s_add_u32 s%d, s%d, 0x%x" % (sM0KX, sT0, L_HI + O_KX))
    a("v_lshlrev_b32 v29, 4, v%d" % c)
    a("v_lshl_add_u32 v29, v%d, 10, v29" % g)
    a("s_lshl_b32 s%d, s%d, 8" % (sT2, sW))
    a("s_add_u32 s%d, s%d, s%d" % (sT2, sT2, sT1))
    a("v_add_u32 v%d, s%d, v29" % (vVXG, sT2))
    a("s_cmp_eq_u32 s%d, 0" % sW)
    a.csel(sT2, KX, VX)
    a("s_add_u32 s%d, s%d, s%d" % (sT2, sT2, sT1))
    a("s_cmp_lt_u32 s%d, 2" % sW)
    a("s_cselect_b32 s%d, s%d, 0x%x" % (sT2, sT2, OOB))
    a("v_lshl_add_u32 v%d, v%d, 7, s%d" % (vTCH, l, sT2))
    a("s_lshl_b32 s%d, s%d, 12" % (sT1, sH))
    a("s_lshl_b32 s%d, s%d, 10" % (sT2, sW))
    a("s_add_u32 s%d, s%d, s%d" % (sT1, sT1, sT2))
    a("v_add_u32 v%d, s%d, v27" % (vPUB, sT1))
    a("v_lshl_add_u32 v29, v%d, 1, v20" % c)
    a("v_lshlrev_b32 v29, 4, v29")
    a("v_lshl_add_u32 v29, v21, 3, v29")
    a("s_lshl_b32 s%d, s%d, 9" % (sT1, sW))
    a("s_add_u32 s%d, s%d, 0x%x" % (sT1, sT1, L_HI + O_Q))
    a("v_add_u32 v%d, s%d, v29" % (vQW, sT1))
    a("v_lshrrev_b32 v29, 2, v%d" % c)
    a("v_lshl_add_u32 v29, v%d, 3, v29" % g)
    a("v_lshlrev_b32 v29, 4, v29")
    a("v_and_b32 v30, 1, v%d" % c)
    a("v_lshl_add_u32 v29, v30, 3, v29")
    a("v_add_u32 v%d, 0x%x, v29" % (vTR, L_HI + O_Q))
    a("v_and_b32 v29, 7, v%d" % c)
    a("v_lshlrev_b32 v29, 4, v29")
    a("v_lshl_add_u32 v29, v%d, 7, v29" % g)
    a("s_lshl_b32 s%d, s%d, 9" % (sT1, sW))
    a("v_add_u32 v29, s%d, v29" % sT1)
    a("v_mov_b32 v30, 0x%x" % (L_HI + O_Q))
    a("v_mov_b32 v31, 0x%x" % (L_HI + O_O))
    a("v_cndmask_b32 v30, v30, v31, vcc")
    a("v_add_u32 v%d, v29, v30" % vOW)
    a("v_lshrrev_b32 v29, 2, v%d" % c)
    a("v_lshl_add_u32 v29, v29, 1, v21")
    a("v_lshlrev_b32 v29, 12, v29")
    a("v_and_b32 v30, 3, v%d" % c)
    a("v_lshl_add_u32 v30, v30, 1, v20")
    a("v_lshl_add_u32 v29, v30, 4, v29")
    a("s_lshl_b32 s%d, s%d, 17" % (sT1, sW))
    a("s_lshl_b32 s%d, s%d, 7" % (sT2, sH))
    a("s_add_u32 s%d, s%d, s%d" % (sT1, sT1, sT2))
    a("s_add_u32 s%d, s%d, 0x%x" % (sT1, sT1, PART))
    a("v_add_u32 v%d, s%d, v29" % (vPST, sT1))
    for p, s_ in enumerate((sP0, sP1, sP2, sP3)):
        a("s_mov_b32 s%d, %d" % (s_, p * 32768))
    a("s_lshl_b32 s%d, s%d, 2" % (sT1, sH))
    a("s_add_u32 s%d, s%d, s%d" % (sT1, sT1, sW))
    a("s_lshl_b32 s%d, s%d, 12" % (sT2, sT1))
    a("s_add_u32 s%d, s%d, 0x%x" % (sT2, sT2, PART))
    a("v_add_u32 v%d, s%d, v27" % (vPLD, sT2))
    a("v_lshl_add_u32 v29, v21, 1, v20")
    a("v_lshlrev_b32 v29, 4, v29")
    a("v_and_b32 v30, 6, v%d" % l)
    a("v_lshl_add_u32 v29, v30, 1, v29")
    a("s_lshl_b32 s%d, s%d, 6" % (sT2, sT1))
    a("s_add_u32 s%d, s%d, 0x%x" % (sT2, sT2, MEMRING))
    a("v_add_u32 v29, s%d, v29" % sT2)
    a("v_and_b32 v30, 9, v%d" % l)
    a("v_cmp_eq_u32 vcc, 0, v30")
    a("v_mov_b32 v30, 0x%x" % OOB)
    a("s_nop 0")
    a("v_cndmask_b32 v%d, v30, v29, vcc" % vMST)
    a("s_mov_b32 s%d, 0x%x" % (sC, f2u(CSCALE)))
    a("s_mov_b32 s%d, 0xfffffffe" % sNOT1)
    a("v_mov_b32 v112, 0")
    a("v_mov_b32 v113, 0")
    a("v_mov_b32 v114, 0")
    a("v_mov_b32 v115, 0")
    a("v_mov_b32 v116, -1")
    for i in range(4):
        a("buffer_store_dwordx4 v[112:115], v%d, %s, 0 offen offset:%d%s" % (vPLD, sr(S_WS, 4), i * 1024, sc))
    for i in range(4):
        a("s_mov_b32 s%d, %d" % (sT0, i * 8192))
        a("buffer_store_dword v116, v%d, %s, s%d offen%s" % (vMST, sr(S_WS, 4), sT0, sc))
    a("v_and_b32 v29, 7, v%d" % l)
    a("v_lshrrev_b32 v30, 3, v%d" % l)
    a("v_lshlrev_b32 v30, 4, v30")
    a("v_lshl_add_u32 v29, v29, 10, v30")
    a("s_lshl_b32 s%d, s%d, 8" % (sT0, sW))
    a("buffer_load_dwordx4 v[120:123], v29, %s, s%d offen" % (sr(S_M0, 4), sT0))
    a("buffer_load_dwordx4 v[124:127], v29, %s, s%d offen offset:128" % (sr(S_M0, 4), sT0))
    a("s_waitcnt vmcnt(0)")
    a("s_barrier")
    Lsk = a.newlabel("CARR")
    a("s_cmp_lg_u32 s%d, 0" % sW)
    a("s_cbranch_scc1 %s" % Lsk)
    a("v_mov_b32 v117, 1")
    a("v_mov_b32 v118, 0x%x" % OOB)
    a("v_cmp_eq_u32 vcc, 0, v%d" % l)
    a("v_mov_b32 v119, 32")
    a("s_nop 0")
    a("v_cndmask_b32 v118, v118, v119, vcc")
    a("buffer_atomic_add v117, v118, %s, 0 offen" % sr(S_DBG, 4))
    a.label(Lsk)
    nb = len(batches)
    for bi in range(nb):
        if bi + 1 < nb:
            if bi > 0:
                pass
            issue_overflow_guard = (bi == 0)
            issue(bi + 1)
            a("s_waitcnt vmcnt(32)")
        else:
            a("s_waitcnt vmcnt(0)")
        consume(bi)


def chain_loop(a, sc, Lend, stamps=False, stamp_step=20):
    a.c("---- chain: wait for the team, then the 64 steps ----")
    Lt = a.newlabel("CTEAM")
    Lab = a.newlabel("CABORT")
    a("s_mov_b32 s%d, 0" % sSPIN)
    a("v_mov_b32 v117, 32")
    a.label(Lt)
    a("buffer_load_dword v118, v117, %s, 0 offen sc1" % sr(S_DBG, 4))
    a("s_add_u32 s%d, s%d, 1" % (sSPIN, sSPIN))
    a("s_cmp_gt_u32 s%d, 0x40000" % sSPIN)
    a("s_cbranch_scc1 %s" % Lab)
    a("s_waitcnt vmcnt(0)")
    a("v_cmp_ne_u32 vcc, 32, v118")
    a("s_cbranch_vccnz %s" % Lt)
    a("s_mov_b32 s%d, 0" % sS)
    a("s_mov_b32 s%d, 0" % sSLOT)
    a("s_mov_b32 s%d, 8192" % sSLOTN)
    a("s_mov_b32 s%d, 16384" % sSLOTR)
    a("s_mov_b32 s%d, 0x%x" % (sKX, KX))
    a("s_mov_b32 s%d, 0x%x" % (sVX0, VX))
    a("s_mov_b32 s%d, 0x%x" % (sVX1, VX + 4096))
    a("s_mov_b32 s%d, 0x%x" % (sTOUCH, 2 * 0x40000))
    a("s_mov_b32 s%d, 0x%x" % (sPUBK, OOB))
    a("s_mov_b32 s%d, 0x%x" % (sPUBV, OOB))
    a("s_mov_b32 s%d, 1" % sPH)
    for r in range(8):
        a("v_mov_b32 v%d, v%d" % (G2 + r, 120 + r))
    for r in range(AQ, AQ + 24):
        a("v_mov_b32 v%d, 0" % r)
    for r in range(KPUB, KPUB + 8):
        a("v_mov_b32 v%d, 0" % r)
    Ltop, Lgot = a.newlabel("CTOP"), a.newlabel("CGOT")
    a("s_branch %s" % Lgot)
    a.label(Ltop)
    a("s_mov_b32 s%d, 0" % sSPIN)
    Lp2 = a.newlabel("CP2")
    a.label(Lp2)
    a("buffer_load_dwordx4 %s, v%d, %s, s%d offen sc1" % (vr(G2, 4), vMEMG, sr(S_WS, 4), sSLOT))
    a("buffer_load_dwordx4 %s, v%d, %s, s%d offen offset:1024 sc1" % (vr(G2 + 4, 4), vMEMG, sr(S_WS, 4), sSLOT))
    a("s_add_u32 s%d, s%d, 1" % (sSPIN, sSPIN))
    a("s_cmp_gt_u32 s%d, 0x40000" % sSPIN)
    a("s_cbranch_scc1 %s" % Lab)
    a("s_waitcnt vmcnt(1)")
    a("v_max3_u32 v%d, v%d, v%d, v%d" % (G2 + 8, G2, G2 + 1, G2 + 2))
    a("s_waitcnt vmcnt(0)")
    a("v_max3_u32 v%d, v%d, v%d, v%d" % (G2 + 9, G2 + 3, G2 + 4, G2 + 5))
    a("v_max3_u32 v%d, v%d, v%d, v%d" % (G2 + 8, G2 + 8, G2 + 6, G2 + 7))
    a("v_max_u32 v%d, v%d, v%d" % (G2 + 8, G2 + 8, G2 + 9))
    a("v_cmp_eq_u32 vcc, -1, v%d" % (G2 + 8))
    a("s_cbranch_vccnz %s" % Lp2)
    a.label(Lgot)
    stamp(a, stamps, 0)
    a("ds_write_b128 v%d, %s" % (vMEML, vr(G2, 4)))
    a("ds_write_b128 v%d, %s offset:1024" % (vMEML, vr(G2 + 4, 4)))
    a("s_mov_b32 m0, s%d" % sM0KX)
    a("v_mov_b32 v%d, -1" % vZ)
    a("s_waitcnt lgkmcnt(0)")
    a("s_barrier")
    for t in range(8):
        a("ds_read_b128 %s, v%d offset:%d" % (vr(M + 4 * t, 4), vLIN, O_MEM + t * 1024))
    stamp(a, stamps, 1)
    vm = [
        "buffer_load_dwordx4 v%d, %s, s%d offen sc1 lds" % (vKXG, sr(S_WS, 4), sKX),
        "buffer_load_dwordx4 v%d, %s, s%d offen offset:1024 sc1 lds" % (vKXG, sr(S_WS, 4), sKX),
        "buffer_load_dwordx4 %s, v%d, %s, s%d offen sc1" % (vr(VXF, 4), vVXG, sr(S_WS, 4), sVX0),
        "buffer_load_dwordx4 %s, v%d, %s, s%d offen sc1" % (vr(VXF + 4, 4), vVXG, sr(S_WS, 4), sVX1),
        "buffer_store_dwordx4 %s, v%d, %s, s%d offen sc1" % (vr(KPUB, 4), vPUB, sr(S_WS, 4), sPUBK),
        "buffer_store_dwordx4 %s, v%d, %s, s%d offen sc1" % (vr(VMF, 4), vPUB, sr(S_WS, 4), sPUBV),
        "buffer_store_dword v%d, v%d, %s, s%d offen%s" % (vZ, vMST, sr(S_WS, 4), sSLOTR, sc),
        "buffer_load_dword v%d, v%d, %s, s%d offen sc1" % (vJUNK, vTCH, sr(S_WS, 4), sTOUCH),
    ]
    a(vm[0])
    a(vm[1])
    for t in range(8):
        a("s_waitcnt lgkmcnt(%d)" % (7 - t) + (" ; nocheck" if stamps else ""))
        a(smf(AQ, M + 4 * t, wq(0, t)))
        if t + 2 < len(vm):
            a(vm[t + 2])
        a(smf(AQ + 4, M + 4 * t, wq(1, t)))
    stamp(a, stamps, 2)
    kk = []
    for t in range(8):
        kk.append(smf(AK, M + 4 * t, wk(0, t)))
        kk.append(smf(AK + 4, M + 4 * t, wk(1, t)))

    def halfadd(A):
        f = []
        for j in range(4):
            f.append("v_permlane32_swap_b32 v%d, v%d" % (A + j, A + 4 + j))
        for j in range(4):
            f.append("v_add_f32 v%d, v%d, v%d" % (A + j, A + j, A + 4 + j))
        return f

    a(kk[0]); a(kk[1]); a(kk[2])
    a("s_nop 4")
    fq = halfadd(AQ) + ["v_cvt_pk_bf16_f32 v%d, v%d, v%d" % (T0 + 0 + 0, AQ, AQ + 1)]
    fq = halfadd(AQ) + ["v_cvt_pk_bf16_f32 v%d, v%d, v%d" % (G2 + 8, AQ, AQ + 1),
                        "v_cvt_pk_bf16_f32 v%d, v%d, v%d" % (G2 + 9, AQ + 2, AQ + 3),
                        "ds_write_b64 v%d, %s" % (vQW, vr(G2 + 8, 2))]
    for x in merge(kk[3:9], fq, 2):
        a(x)
    a("s_waitcnt vmcnt(6) lgkmcnt(0)")
    a("s_barrier")
    rq = []
    for ks in range(4):
        for hf in range(2):
            rq.append("ds_read_b64_tr_b16 %s, v%d offset:%d" % (vr(QF + 4 * ks + 2 * hf, 2), vTR, ks * 512 + hf * 64))
        for T in range(2):
            rq.append("ds_read_b128 %s, v%d offset:%d" % (vr(KXF + (T * 4 + ks) * 4, 4), vLIN, O_KX + (T * 4 + ks) * 1024))
    for x in merge(kk[9:], rq, [2, 2, 2, 2, 3, 3, 2]):
        a(x)
    stamp(a, stamps, 3)
    sx = []
    for ks in range(4):
        for T in range(2):
            d = vr(S0 + 4 * T, 4)
            sx.append("v_mfma_f32_16x16x32_bf16 %s, %s, %s, %s" % (d, vr(KXF + (T * 4 + ks) * 4, 4), vr(QF + 4 * ks, 4), "0" if ks == 0 else d))
    vv = []
    for t in range(8):
        vv.append(smf(AV, M + 4 * t, wv(0, t)))
        vv.append(smf(AV + 4, M + 4 * t, wv(1, t)))
    fk = halfadd(AK) + ["v_cvt_pk_bf16_f32 v%d, v%d, v%d" % (AK + 4, AK, AK + 1),
                        "v_cvt_pk_bf16_f32 v%d, v%d, v%d" % (AK + 5, AK + 2, AK + 3),
                        "ds_write_b64 v%d, %s offset:2048" % (vQW, vr(AK + 4, 2))]
    a(vv[0]); a(vv[1])
    a("s_waitcnt lgkmcnt(12)" + (" ; nocheck" if stamps else ""))
    a(sx[0]); a(sx[1])
    a("s_nop 2")
    a(fk[0]); a(fk[1])
    a("s_waitcnt lgkmcnt(8)" + (" ; nocheck" if stamps else ""))
    a(sx[2]); a(fk[2]); a(fk[3]); a(sx[3]); a(fk[4]); a(fk[5])
    a("s_waitcnt lgkmcnt(4)" + (" ; nocheck" if stamps else ""))
    a(sx[4]); a(fk[6]); a(fk[7]); a(sx[5]); a(fk[8]); a(fk[9])
    a("s_waitcnt lgkmcnt(0)")
    a(fk[10])
    a(sx[6]); a(sx[7])
    a(vv[2])
    a("s_waitcnt lgkmcnt(0)")
    a("s_barrier")
    rk = []
    for ks in range(4):
        for hf in range(2):
            rk.append("ds_read_b64_tr_b16 %s, v%d offset:%d" % (vr(KF + 4 * ks + 2 * hf, 2), vTR, 2048 + ks * 512 + hf * 64))
    for x in rk:
        a(x)
    a("v_lshl_add_u32 v%d, s%d, 9, v%d" % (T2, sW, vTR))
    a(vv[3])
    a("ds_read_b64_tr_b16 %s, v%d offset:2048" % (vr(KPUB, 2), T2))
    a("ds_read_b64_tr_b16 %s, v%d offset:2112" % (vr(KPUB + 2, 2), T2))
    stamp(a, stamps, 4)
    fx = ["v_max3_f32 v%d, v%d, v%d, v%d" % (T0, S0, S0 + 1, S0 + 2),
          "v_max3_f32 v%d, v%d, v%d, v%d" % (T1, S0 + 3, S0 + 4, S0 + 5),
          "v_max3_f32 v%d, v%d, v%d, v%d" % (T0, T0, S0 + 6, S0 + 7),
          "v_max_f32 v%d, v%d, v%d" % (T0, T0, T1),
          "v_mov_b32 v%d, v%d" % (T1, T0)]
    sm = []
    for ks in range(4):
        d = vr(SM, 4)
        sm.append("v_mfma_f32_16x16x32_bf16 %s, %s, %s, %s" % (d, vr(KF + 4 * ks, 4), vr(QF + 4 * ks, 4), "0" if ks == 0 else d))
    a(vv[4])
    a(fx[0]); a(fx[1]); a(vv[5]); a(fx[2]); a(fx[3]); a(fx[4])
    a("s_waitcnt lgkmcnt(8)" + (" ; nocheck" if stamps else ""))
    a(sm[0])
    a("s_waitcnt lgkmcnt(6)" + (" ; nocheck" if stamps else ""))
    a("v_permlane32_swap_b32 v%d, v%d" % (T0, T1))
    a(sm[1])
    a("v_max_f32 v%d, v%d, v%d" % (T0, T0, T1))
    a("v_mov_b32 v%d, v%d" % (T1, T0))
    a("s_waitcnt lgkmcnt(4)" + (" ; nocheck" if stamps else ""))
    a(sm[2])
    a("s_waitcnt lgkmcnt(2)" + (" ; nocheck" if stamps else ""))
    a("v_permlane16_swap_b32 v%d, v%d" % (T0, T1))
    a(sm[3])
    a("v_max_f32 v%d, v%d, v%d" % (T0, T0, T1))
    a("v_mul_f32 v%d, s%d, v%d" % (vMC, sC, T0))
    fe = []
    for i in range(8):
        fe.append("v_fma_f32 v%d, v%d, s%d, -v%d" % (S0 + i, S0 + i, sC, vMC))
    for i in range(8):
        fe.append("v_exp_f32 v%d, v%d" % (S0 + i, S0 + i))
    for x in merge(vv[6:12], fe, [3, 3, 2, 2, 2, 2]):
        a(x)
    for j in range(4):
        a("v_fma_f32 v%d, v%d, s%d, -v%d" % (SM + j, SM + j, sC, vMC))
    a(vv[12])
    a("v_cvt_pk_bf16_f32 v%d, v%d, v%d" % (PX, S0, S0 + 1))
    a("v_cvt_pk_bf16_f32 v%d, v%d, v%d" % (PX + 1, S0 + 2, S0 + 3))
    a(vv[13])
    a("v_cvt_pk_bf16_f32 v%d, v%d, v%d" % (PX + 2, S0 + 4, S0 + 5))
    a("v_cvt_pk_bf16_f32 v%d, v%d, v%d" % (PX + 3, S0 + 6, S0 + 7))
    a(vv[14])
    a("v_max3_f32 v%d, v%d, v%d, v%d" % (T0, SM, SM + 1, SM + 2))
    a("v_add_f32 v%d, v%d, v%d" % (vZ, S0, S0 + 1))
    a(vv[15])
    a("v_max_f32 v%d, v%d, v%d" % (T0, T0, SM + 3))
    a("v_add_f32 v%d, v%d, v%d" % (T1, S0 + 2, S0 + 3))
    a("v_add_f32 v%d, v%d, v%d" % (T2, S0 + 4, S0 + 5))
    a("v_add_f32 v%d, v%d, v%d" % (T3, S0 + 6, S0 + 7))
    a("v_cmp_lt_f32 vcc, 0x42700000, v%d" % T0)
    a("v_add_f32 v%d, v%d, v%d" % (vZ, vZ, T1))
    a("v_add_f32 v%d, v%d, v%d" % (T2, T2, T3))
    a("s_waitcnt vmcnt(4)")
    a("v_add_f32 v%d, v%d, v%d" % (vZ, vZ, T2))
    for tau in range(2):
        a("v_mfma_f32_16x16x32_bf16 %s, %s, %s, 0" % (vr(OACC + 4 * tau, 4), vr(VXF + 4 * tau, 4), vr(PX, 4)))
    Lfb, Lrj = a.newlabel("CFB"), a.newlabel("CRJ")
    a("s_cbranch_vccnz %s" % Lfb)
    a.label(Lrj)

    def wrd(n, slot):
        return ["ds_read_b128 %s, v%d offset:%d" % (vr(WLAND[slot], 4), vWO, n * 2048),
                "ds_read_b128 %s, v%d offset:%d" % (vr(WLAND[slot] + 4, 4), vWO, n * 2048 + 1024)]
    for j in range(4):
        a("v_exp_f32 v%d, v%d" % (SM + j, SM + j))
        for x in wrd(j, j)[:2]:
            a(x)
    for j in range(4):
        a("v_cvt_pk_bf16_f32 v%d, v%d, v%d" % (VMF + j, AV + 2 * j, AV + 2 * j + 1))
    a("v_cvt_pk_bf16_f32 v%d, v%d, v%d" % (PM, SM, SM + 1))
    a("v_cvt_pk_bf16_f32 v%d, v%d, v%d" % (PM + 1, SM + 2, SM + 3))
    a("v_add_f32 v%d, v%d, v%d" % (T0, SM, SM + 1))
    a("v_add_f32 v%d, v%d, v%d" % (T1, SM + 2, SM + 3))
    for tau in range(2):
        d = vr(OACC + 4 * tau, 4)
        a("v_mfma_f32_16x16x16_bf16 %s, %s, %s, %s" % (d, vr(VMF + 2 * tau, 2), vr(PM, 2), d))
    stamp(a, stamps, 5)
    a("s_cmp_eq_u32 s%d, 63" % sS)
    Lfin = a.newlabel("CFIN")
    a("s_cbranch_scc1 %s" % Lfin)
    a("v_add_f32 v%d, v%d, v%d" % (T0, T0, T1))
    a("v_fma_f32 v%d, v%d, 0.5, v%d" % (vZ, T0, vZ))
    a("v_mov_b32 v%d, v%d" % (T1, vZ))
    for x in wrd(4, 4):
        a(x)
    a("v_permlane32_swap_b32 v%d, v%d" % (vZ, T1))
    a("v_add_f32 v%d, v%d, v%d" % (vZ, vZ, T1))
    a("v_mov_b32 v%d, v%d" % (T1, vZ))
    for x in wrd(5, 5):
        a(x)
    a("v_permlane16_swap_b32 v%d, v%d" % (vZ, T1))
    a("v_add_f32 v%d, v%d, v%d" % (vZ, vZ, T1))
    a("v_rcp_f32 v%d, v%d" % (vZ, vZ))
    a("v_mov_b32 v%d, 0" % WACC[0])
    for i in range(8):
        a("v_mul_f32 v%d, v%d, v%d" % (OACC + i, OACC + i, vZ))
    for j in range(4):
        a("v_cvt_pk_bf16_f32 v%d, v%d, v%d" % (OF + j, OACC + j, OACC + 4 + j))
    a("ds_write_b128 v%d, %s" % (vOW, vr(OF, 4)))
    for p in range(4):
        for i in range(8):
            if not (p == 0 and i == 0):
                a("v_mov_b32 v%d, 0" % (WACC[p] + i))
    a("s_waitcnt lgkmcnt(0)")
    a("s_barrier")
    a("ds_read_b128 %s, v%d offset:%d" % (vr(OF, 4), vLIN, O_O))
    a("ds_read_b128 %s, v%d offset:%d" % (vr(OF + 4, 4), vLIN, O_O + 1024))
    stamp(a, stamps, 6)
    sP = (sP0, sP1, sP2, sP3)

    def fin(p):
        A = WACC[p]
        return halfadd(A) + ["v_and_or_b32 v%d, v%d, s%d, v%d" % (A, A, sNOT1, vMC),
                             "buffer_store_dwordx4 %s, v%d, %s, s%d offen%s" % (vr(A, 4), vPST, sr(S_WS, 4), sP[p], sc)]
    a("v_mov_b32 v%d, s%d" % (vMC, sPH))
    pend = 2
    queue = ["of0", "of1"]
    fill = []
    for n in range(16):
        p, t, tau = n >> 2, (n >> 1) & 1, n & 1
        needs = ["of%d" % t, "w%d" % n]
        idx = max([i for i, q in enumerate(queue) if q in needs], default=-1)
        if idx >= 0:
            a("s_waitcnt lgkmcnt(%d)" % (len(queue) - 1 - idx) + (" ; nocheck" if stamps else ""))
            queue = queue[idx + 1:]
        a(smf(WACC[p] + 4 * tau, OF + 4 * t, vr(WLAND[n % 6], 8)))
        if n + 6 < 16:
            for x in wrd(n + 6, n % 6):
                a(x)
            queue += ["w%d" % (n + 6)] * 2
        if p >= 1:
            if n % 4 == 1:
                fill = fin(p - 1)
                a("s_nop 1")
            k = {0: 0, 1: 3, 2: 4, 3: 3}[n % 4]
            for _ in range(k):
                if fill:
                    a(fill.pop(0))
    a("s_nop 7")
    for x in fin(3):
        a(x)
    stamp(a, stamps, 7)
    a("s_add_u32 s%d, s%d, 1" % (sS, sS))
    a("s_mov_b32 s%d, s%d" % (sSLOT, sSLOTN))
    a("s_mov_b32 s%d, s%d" % (sSLOTN, sSLOTR))
    a("s_add_u32 s%d, s%d, 8192" % (sSLOTR, sSLOTR))
    a("s_and_b32 s%d, s%d, 0x7fff" % (sSLOTR, sSLOTR))
    a("s_add_u32 s%d, s%d, 0x40000" % (sKX, sKX))
    a("s_add_u32 s%d, s%d, 0x40000" % (sVX0, sVX0))
    a("s_add_u32 s%d, s%d, 0x40000" % (sVX1, sVX1))
    a("s_add_u32 s%d, s%d, 0x40000" % (sTOUCH, sTOUCH))
    a("s_cmp_gt_u32 s%d, 61" % sS)
    a("s_cselect_b32 s%d, 0x%x, s%d" % (sTOUCH, OOB, sTOUCH))
    a("s_lshl_b32 s%d, s%d, 17" % (sPUBK, sS))
    a("s_add_u32 s%d, s%d, 0x%x" % (sPUBV, sPUBK, VM - 0x20000))
    a("s_add_u32 s%d, s%d, 0x%x" % (sPUBK, sPUBK, KM - 0x20000))
    a("s_mov_b32 s%d, 0" % sSPIN)
    Lp1 = a.newlabel("CP1")
    LD = M
    a.label(Lp1)
    for i in range(4):
        a("buffer_load_dwordx4 %s, v%d, %s, 0 offen offset:%d sc1" % (vr(LD + 4 * i, 4), vPLD, sr(S_WS, 4), i * 1024))
    for r in range(AQ, AQ + 24):
        a("v_mov_b32 v%d, 0" % r)
    a("s_add_u32 s%d, s%d, 1" % (sSPIN, sSPIN))
    a("s_cmp_gt_u32 s%d, 0x40000" % sSPIN)
    a("s_cbranch_scc1 %s" % Lab)
    a("s_waitcnt vmcnt(2)")
    a("v_bitop3_b32 v%d, v%d, v%d, v%d bitop3:0x7e" % (LD + 16, LD, LD + 4, vMC))
    a("v_pk_add_f32 %s, %s, %s" % (vr(LD, 2), vr(LD, 2), vr(LD + 4, 2)))
    a("v_pk_add_f32 %s, %s, %s" % (vr(LD + 2, 2), vr(LD + 2, 2), vr(LD + 6, 2)))
    a("s_waitcnt vmcnt(0)")
    a("v_bitop3_b32 v%d, v%d, v%d, v%d bitop3:0x7e" % (LD + 17, LD + 8, LD + 12, vMC))
    a("v_pk_add_f32 %s, %s, %s" % (vr(LD + 8, 2), vr(LD + 8, 2), vr(LD + 12, 2)))
    a("v_bitop3_b32 v%d, v%d, v%d, 1 bitop3:0xa8" % (LD + 16, LD + 16, LD + 17))
    a("v_pk_add_f32 %s, %s, %s" % (vr(LD + 10, 2), vr(LD + 10, 2), vr(LD + 14, 2)))
    a("v_cmp_ne_u32 vcc, 0, v%d" % (LD + 16))
    a("v_pk_add_f32 %s, %s, %s" % (vr(LD, 2), vr(LD, 2), vr(LD + 8, 2)))
    a("s_cbranch_vccnz %s" % Lp1)
    stamp(a, stamps, 8)
    a("v_pk_add_f32 %s, %s, %s" % (vr(LD + 2, 2), vr(LD + 2, 2), vr(LD + 10, 2)))
    a("s_xor_b32 s%d, s%d, 1" % (sPH, sPH))
    a("v_permlane32_swap_b32 v%d, v%d" % (LD, LD + 1))
    a("v_permlane32_swap_b32 v%d, v%d" % (LD + 2, LD + 3))
    a("v_add_f32 v%d, v%d, v%d" % (LD, LD, LD + 1))
    a("v_add_f32 v%d, v%d, v%d" % (LD + 2, LD + 2, LD + 3))
    a("s_nop 1")
    a("v_permlane16_swap_b32 v%d, v%d" % (LD, LD + 2))
    a("v_add_f32 v%d, v%d, v%d" % (LD, LD, LD + 2))
    a("s_nop 1")
    a("v_add_f32_dpp v%d, v%d, v%d row_ror:8 row_mask:0xf bank_mask:0xf" % (LD + 1, LD, LD))
    a("s_nop 1")
    a("v_mov_b32_dpp v%d, v%d quad_perm:[1,0,3,2] row_mask:0xf bank_mask:0xf" % (LD + 2, LD + 1))
    a("v_cvt_pk_bf16_f32 v%d, v%d, v%d" % (LD, LD + 1, LD + 2))
    a("v_min_u32 v%d, s%d, v%d" % (LD, sNOT1, LD))
    a("buffer_store_dword v%d, v%d, %s, s%d offen%s" % (LD, vMST, sr(S_WS, 4), sSLOT, sc))
    stamp(a, stamps, 9)
    if stamps:
        Lns = a.newlabel("CNS")
        a("s_cmp_lg_u32 s%d, %d" % (sS, stamp_step + 1))
        a("s_cbranch_scc1 %s" % Lns)
        a("s_waitcnt lgkmcnt(0)")
        a("s_lshl_b32 s%d, s%d, 2" % (sT0, sH))
        a("s_add_u32 s%d, s%d, s%d" % (sT0, sT0, sW))
        a("s_lshl_b32 s%d, s%d, 7" % (sT0, sT0))
        a("s_add_u32 s%d, s%d, 0x%x" % (sT0, sT0, STAMP))
        a("v_mov_b32 v%d, 0" % (LD + 20))
        for k in range(10):
            a("v_mov_b32 v%d, s%d" % (LD + 21, sSTAMP + 2 * k))
            a("buffer_store_dword v%d, v%d, %s, s%d offen offset:%d" % (LD + 21, LD + 20, sr(S_WS, 4), sT0, 4 * k))
            a("s_nop 1")
        a.label(Lns)
    a("s_branch %s" % Ltop)
    a.label(Lfb)
    a("v_mov_b32 v%d, v%d" % (T1, T0))
    a("s_nop 1")
    a("v_permlane32_swap_b32 v%d, v%d" % (T0, T1))
    a("v_max_f32 v%d, v%d, v%d" % (T0, T0, T1))
    a("v_mov_b32 v%d, v%d" % (T1, T0))
    a("s_nop 1")
    a("v_permlane16_swap_b32 v%d, v%d" % (T0, T1))
    a("v_max3_f32 v%d, v%d, v%d, 0" % (T0, T0, T1))
    for j in range(4):
        a("v_sub_f32 v%d, v%d, v%d" % (SM + j, SM + j, T0))
    a("v_exp_f32 v%d, -v%d" % (T0, T0))
    a("s_nop 7")
    for i in range(8):
        a("v_mul_f32 v%d, v%d, v%d" % (OACC + i, OACC + i, T0))
    a("v_mul_f32 v%d, v%d, v%d" % (vZ, vZ, T0))
    a("s_branch %s" % Lrj)
    a.label(Lfin)
    a("s_mov_b32 s%d, 0x%x" % (sPUBK, KM + 63 * 0x20000))
    a("s_mov_b32 s%d, 0x%x" % (sPUBV, VM + 63 * 0x20000))
    a("s_waitcnt lgkmcnt(0)")
    a(vm[4])
    a(vm[5])
    a("s_waitcnt vmcnt(0)")
    a.label(Lab)
    a("s_branch %s" % Lend)
```

```python
FLAGS = 0x0
MEMRING = 0x8000
PART = 0x10000
GATE = 0x90000
STAMP = 0xA0000
MB = 1 << 20
KX = 1 * MB
VX = KX + 16 * MB
QX = VX + 16 * MB
OO = QX + 16 * MB
HH = OO + 16 * MB
KM = HH + 8 * MB
VM = KM + 8 * MB
WS_BYTES = 268435456
OOB = 0x40000000

KA_X, KA_MEM0, KA_WQ, KA_WK, KA_WV, KA_WO = 0, 8, 16, 24, 32, 40
KA_W1, KA_B1, KA_W2, KA_B2, KA_GW, KA_OUT, KA_DBG, KA_WS = 64, 72, 80, 88, 96, 104, 112, 120

SEL_LO = 0x05040100
SEL_HI = 0x07060302


def key_T(k):
    return (k >> 3) & 1


def key_c(k):
    return 8 * (k >> 4) + 4 * ((k >> 2) & 1) + (k & 3)


def key_pos(k):
    return key_T(k) * 16 + key_c(k)
```

```python
from asmlib import *
from layout import *


def srd(a, s, kaoff, nbytes):
    a("s_load_dwordx2 %s, s[0:1], %d" % (sr(s, 2), kaoff))


def srd_fin(a, s, nbytes):
    a("s_and_b32 s%d, s%d, 0xffff" % (s + 1, s + 1))
    a("s_mov_b32 s%d, 0x%x" % (s + 2, nbytes))
    a("s_mov_b32 s%d, 0x20000" % (s + 3))


def key_pos_v(a, dst, n, t0, t1):
    a("v_and_b32 v%d, 7, v%d" % (dst, n))
    a("v_lshrrev_b32 v%d, 4, v%d" % (t0, n))
    a("v_lshl_add_u32 v%d, v%d, 3, v%d" % (dst, t0, dst))
    a("v_bfe_u32 v%d, v%d, 3, 1" % (t0, n))
    a("v_lshl_add_u32 v%d, v%d, 4, v%d" % (dst, t0, dst))


S_W, S_X, S_WS, S_B1 = 4, 8, 12, 16
sCB, sJ, sWV, sSTR, sCOL0, sTYPE = 20, 21, 22, 23, 24, 25
sSEL0, sSEL1 = 26, 27
sOUT, sSEG, sT0, sT1, sT2, sIT, sROW, sK0, sK1 = 28, 29, 30, 31, 32, 33, 34, 35, 36
vL = 1
vA = 2
vL16 = 10
vST, vST2 = 11, 12
vOW = 13
vT = 21
XF = 24
ACC = 64
BIAS = 128
PK = 160
GT = 192


def acc(rt, tau):
    return ACC + (rt * 2 + tau) * 16


def wfrag(tau, ks):
    return (tau * 32 + ks) * 4


def p1_dma(a, sbuf_is_next):
    for q in range(4):
        a("s_add_u32 m0, s%d, %d" % (sT2, q * 4096))
        a("s_add_u32 s%d, s%d, %d" % (sT0, sROW, q * 4096))
        for r in range(4):
            i = q * 4 + r
            a("v_xor_b32 v%d, %d, v%d" % (vT + (r & 1), i * 16, vL16))
            a("buffer_load_dwordx4 v%d, %s, s%d offen offset:%d lds" % (vT + (r & 1), sr(S_X, 4), sT0, r * 1024))


def p1_mainloop(a, kind, done_hook=None):
    L = a.newlabel("P1L")
    a("s_mov_b32 s%d, 0" % sIT)
    a.label(L)
    a("s_waitcnt vmcnt(8)")
    a("s_barrier")
    Lskip = a.newlabel("P1S")
    a("s_cmp_ge_u32 s%d, 7" % sIT)
    a("s_cbranch_scc1 %s" % Lskip)
    a("s_add_u32 s%d, s%d, 0x40000" % (sROW, sROW))
    a("s_xor_b32 s%d, s%d, 0x10000" % (sT2, sT2))
    p1_dma(a, True)
    a.label(Lskip)

    def rd(ks, rt):
        return "ds_read_b128 %s, v%d offset:%d" % (vr(XF + (ks & 3) * 8 + rt * 4, 4), vA + (ks & 7), (ks >> 3) * 256 + rt * 32768)

    for ks in range(3):
        a(rd(ks, 0))
        a(rd(ks, 1))
    for ks in range(32):
        out = min(31 - ks, 2) * 2
        a("s_waitcnt lgkmcnt(%d)" % out)
        n = 0
        for rt in range(2):
            for tau in range(2):
                xf = vr(XF + (ks & 3) * 8 + rt * 4, 4)
                wf = ar(wfrag(tau, ks), 4)
                d = vr(acc(rt, tau), 16)
                if ks == 0:
                    cin = vr(BIAS + tau * 16, 16) if kind == 'h' else "0"
                else:
                    cin = d
                if kind == 'v':
                    a("v_mfma_f32_32x32x16_bf16 %s, %s, %s, %s" % (d, xf, wf, cin))
                else:
                    a("v_mfma_f32_32x32x16_bf16 %s, %s, %s, %s" % (d, wf, xf, cin))
                if ks + 3 < 32 and n < 2:
                    a(rd(ks + 3, n))
                n += 1
    for k in range(8):
        a("v_xor_b32 v%d, 0x10000, v%d" % (vA + k, vA + k))
    a("s_nop 3")
    for rt in range(2):
        if rt == 0:
            a("s_mov_b32 s%d, s%d" % (sT0, sOUT))
        else:
            a("s_add_u32 s%d, s%d, s%d" % (sT0, sOUT, sSEG))
        if kind == 'h':
            for tau in range(2):
                base = acc(rt, tau)
                for r0 in range(0, 16, 4):
                    rs = range(r0, r0 + 4)
                    for r in rs:
                        a("v_mul_f32 v%d, v%d, v%d" % (GT + r - r0, base + r, base + r))
                    for r in rs:
                        a("v_fma_f32 v%d, v%d, s%d, v%d" % (GT + r - r0, GT + r - r0, sK1, GT + 8))
                    for r in rs:
                        a("v_mul_f32 v%d, v%d, v%d" % (GT + r - r0, GT + r - r0, base + r))
                    for r in rs:
                        a("v_exp_f32 v%d, -v%d" % (GT + r - r0, GT + r - r0))
                    a("s_nop 0")
                    for r in rs:
                        a("v_add_f32 v%d, 1.0, v%d" % (GT + r - r0, GT + r - r0))
                    for r in rs:
                        a("v_rcp_f32 v%d, v%d" % (GT + r - r0, GT + r - r0))
                    a("s_nop 0")
                    for r in rs:
                        a("v_mul_f32 v%d, v%d, v%d" % (base + r, base + r, GT + r - r0))
        if kind in ('kq', 'h'):
            for i in range(4):
                p = PK + (rt * 4 + i) * 4
                for j in range(4):
                    a("v_cvt_pk_bf16_f32 v%d, v%d, v%d" % (p + j, acc(rt, 0) + 4 * i + j, acc(rt, 1) + 4 * i + j))
                off = (i >> 1) * 1024 + (i & 1) * 512 if kind == 'kq' else i * 1024
                a("buffer_store_dwordx4 %s, v%d, %s, s%d offen offset:%d sc1" % (vr(p, 4), vST, sr(S_WS, 4), sT0, off))
        else:
            for tau in range(2):
                for m in range(2):
                    p = PK + (rt * 4 + tau * 2 + m) * 4
                    for j in range(4):
                        b = acc(rt, tau) + 8 * m + 2 * j
                        a("v_cvt_pk_bf16_f32 v%d, v%d, v%d" % (p + j, b, b + 1))
                    a("buffer_store_dwordx4 %s, v%d, %s, s%d offen offset:%d sc1" % (vr(p, 4), vST2 if tau else vST, sr(S_WS, 4), sT0, m * 2048))
    if done_hook:
        done_hook(a)
    a("s_lshl_b32 s%d, s%d, 3" % (sT0, sSEG))
    a("s_add_u32 s%d, s%d, s%d" % (sOUT, sOUT, sT0))
    a("s_add_u32 s%d, s%d, 1" % (sIT, sIT))
    a("s_cmp_lt_u32 s%d, 8" % sIT)
    a("s_cbranch_scc1 %s" % L)


def p1_gate(a, Lend):
    S_GW = 40
    a("s_load_dwordx2 s[40:41], s[0:1], %d" % KA_GW)
    a("s_sub_u32 s%d, s%d, 54" % (sT0, sCB))
    a("s_lshl_b32 s%d, s%d, 2" % (sT0, sT0))
    a("s_add_u32 s%d, s%d, s%d" % (sT0, sT0, sJ))
    a("s_lshl_b32 s%d, s%d, 8" % (sT0, sT0))
    a("v_add_u32 v2, s%d, v0" % sT0)
    a("v_lshlrev_b32 v3, 10, v2")
    a("v_mov_b32 v4, 0")
    a("v_mov_b32 v5, 0")
    a("s_mov_b32 s%d, 0" % sT1)
    a("s_waitcnt lgkmcnt(0)")
    L = a.newlabel("GL")
    a.label(L)
    a("s_load_dwordx16 s[44:59], s[40:41], s%d" % sT1)
    for q in range(4):
        a("buffer_load_dwordx4 %s, v3, %s, s%d offen offset:%d" % (vr(8 + q * 4, 4), sr(S_X, 4), sT1, q * 16))
    a("s_waitcnt vmcnt(0) lgkmcnt(0)")
    for q in range(16):
        a("s_lshl_b32 s60, s%d, 16" % (44 + q))
        a("s_and_b32 s61, s%d, 0xffff0000" % (44 + q))
        a("v_lshlrev_b32 v6, 16, v%d" % (8 + q))
        a("v_and_b32 v7, 0xffff0000, v%d" % (8 + q))
        a("v_fmac_f32 v4, s60, v6")
        a("v_fmac_f32 v5, s61, v7")
    a("s_add_u32 s%d, s%d, 64" % (sT1, sT1))
    a("s_cmp_lt_u32 s%d, 1024" % sT1)
    a("s_cbranch_scc1 %s" % L)
    a("v_add_f32 v4, v4, v5")
    a("v_cvt_pk_bf16_f32 v4, v4, v4")
    a("v_lshlrev_b32 v4, 16, v4")
    a("v_mul_f32 v4, 0xbfb8aa3b, v4")
    a("v_exp_f32 v4, v4")
    a("s_nop 0")
    a("v_add_f32 v4, 1.0, v4")
    a("v_rcp_f32 v4, v4")
    a("s_nop 0")
    a("v_cvt_pk_bf16_f32 v4, v4, v4")
    a("v_lshlrev_b32 v4, 16, v4")
    a("v_lshlrev_b32 v2, 2, v2")
    a("s_mov_b32 s%d, 0x%x" % (sT0, GATE))
    a("buffer_store_dword v4, v2, %s, s%d offen sc1" % (sr(S_WS, 4), sT0))
    a("s_branch %s" % Lend)


def phase1(a, sX, sR, Lend, done_hook=None):
    a.c("---- phase 1 ----")
    a("s_sub_u32 s%d, s%d, 1" % (sCB, sX))
    a("s_lshl_b32 s%d, s%d, 3" % (sCB, sCB))
    a("s_lshr_b32 s%d, s%d, 2" % (sT0, sR))
    a("s_add_u32 s%d, s%d, s%d" % (sCB, sCB, sT0))
    a("s_and_b32 s%d, s%d, 3" % (sJ, sR))
    a("s_lshr_b32 s%d, s%d, 4" % (sTYPE, sCB))
    a("s_mov_b32 s%d, %d" % (sT0, KA_WK))
    a("s_cmp_eq_u32 s%d, 1" % sTYPE)
    a("s_cselect_b32 s%d, %d, s%d" % (sT0, KA_WV, sT0))
    a("s_cmp_eq_u32 s%d, 2" % sTYPE)
    a("s_cselect_b32 s%d, %d, s%d" % (sT0, KA_WQ, sT0))
    a("s_cmp_eq_u32 s%d, 3" % sTYPE)
    a("s_cselect_b32 s%d, %d, s%d" % (sT0, KA_W1, sT0))
    a("s_load_dwordx2 %s, s[0:1], s%d" % (sr(S_W, 2), sT0))
    srd(a, S_X, KA_X, 0)
    srd(a, S_WS, KA_WS, 0)
    srd(a, S_B1, KA_B1, 0)
    a("v_lshrrev_b32 v%d, 6, v0" % vT)
    a("v_and_b32 v%d, 63, v0" % vL)
    a("v_readfirstlane_b32 s%d, v%d" % (sWV, vT))
    a("s_mov_b32 s%d, 0x%x" % (sSEL0, SEL_LO))
    a("s_mov_b32 s%d, 0x%x" % (sSEL1, SEL_HI))
    a("s_cmp_eq_u32 s%d, 3" % sTYPE)
    a.csel(sSTR, 2752, 8192)
    a.csel(sT1, 512 * 2752, 512 * 8192)
    a("s_waitcnt lgkmcnt(0)")
    a("s_and_b32 s%d, s%d, 0xffff" % (S_W + 1, S_W + 1))
    a("s_mov_b32 s%d, s%d" % (S_W + 2, sT1))
    a("s_mov_b32 s%d, 0x20000" % (S_W + 3))
    srd_fin(a, S_X, 2048 * 1024)
    srd_fin(a, S_WS, WS_BYTES)
    srd_fin(a, S_B1, 2752)
    Lg = a.newlabel("P1NG")
    a("s_cmp_lt_u32 s%d, 54" % sCB)
    a("s_cbranch_scc1 %s" % Lg)
    p1_gate(a, Lend)
    a.label(Lg)
    a("s_and_b32 s%d, s%d, 15" % (sT0, sCB))
    a("s_lshl_b32 s%d, s%d, 8" % (sCOL0, sT0))
    a("s_lshl_b32 s%d, s%d, 6" % (sT1, sWV))
    a("s_add_u32 s%d, s%d, s%d" % (sCOL0, sCOL0, sT1))
    a("v_lshlrev_b32 v%d, 4, v%d" % (vL16, vL))
    a("s_lshl_b32 s%d, s%d, 16" % (sROW, sJ))
    a("s_lshl_b32 s%d, s%d, 14" % (sT2, sWV))
    a("s_add_u32 s%d, s%d, s%d" % (sROW, sROW, sT2))
    p1_dma(a, False)
    vN, vG = 56, 57
    a("v_and_b32 v%d, 31, v%d" % (vN, vL))
    a("v_lshrrev_b32 v%d, 5, v%d" % (vG, vL))
    a("v_lshl_add_u32 v58, v%d, 1, s%d" % (vN, sCOL0))
    a("s_lshl_b32 s%d, s%d, 3" % (sT0, sSTR))
    a("v_mul_lo_u32 v59, v%d, s%d" % (vG, sT0))
    a("v_lshl_add_u32 v59, v58, 1, v59")
    a("s_cmp_eq_u32 s%d, 3" % sTYPE)
    a.csel(sT0, 1376, 4096)
    a("v_cmp_gt_u32 vcc, s%d, v58" % sT0)
    a("v_mov_b32 v60, 0x%x" % OOB)
    a("s_nop 0")
    a("v_cndmask_b32 v%d, v60, v59, vcc" % vOW)
    for jj in range(1, 8):
        a("v_add_u32 v%d, s%d, v%d" % (vOW + jj, sSTR, vOW + jj - 1))
    a("s_lshl_b32 s%d, s%d, 4" % (sK0, sSTR))
    a("s_mov_b32 s%d, 0" % sT0)

    def issue(batch):
        for q in range(4):
            for jj in range(8):
                if q == 3 and jj == 7:
                    a("s_waitcnt vmcnt(62)")
                a("buffer_load_dword v%d, v%d, %s, s%d offen" % (ACC + (batch & 1) * 32 + q * 8 + jj, vOW + jj, sr(S_W, 4), sT0))
            a("s_add_u32 s%d, s%d, s%d" % (sT0, sT0, sK0))
    issue(0)
    a("v_and_b32 v60, 15, v%d" % vN)
    for k in range(8):
        a("v_or_b32 v61, %d, v%d" % (2 * k, vG))
        a("v_xor_b32 v61, v61, v60")
        a("v_lshlrev_b32 v61, 4, v61")
        a("v_lshl_add_u32 v%d, v%d, 10, v61" % (vA + k, vN))
    key_pos_v(a, 62, vN, 61, 63)
    Lv, Lh, Lj = a.newlabel("P1V"), a.newlabel("P1H"), a.newlabel("P1J")
    a("s_lshl_b32 s%d, s%d, 19" % (sOUT, sJ))
    a("s_mov_b32 s%d, 0x40000" % sSEG)
    a("s_lshr_b32 s%d, s%d, 7" % (sT1, sCOL0))
    a("s_lshl_b32 s%d, s%d, 13" % (sT1, sT1))
    a("s_add_u32 s%d, s%d, s%d" % (sOUT, sOUT, sT1))
    a("s_and_b32 s%d, s%d, 1" % (sT1, sWV))
    a("s_cmp_eq_u32 s%d, 1" % sTYPE)
    a("s_cbranch_scc1 %s" % Lv)
    a("s_cmp_eq_u32 s%d, 3" % sTYPE)
    a("s_cbranch_scc1 %s" % Lh)
    a("v_lshrrev_b32 v61, 4, v62")
    a("v_and_b32 v63, 15, v62")
    a("v_lshlrev_b32 v63, 4, v63")
    a("v_lshl_add_u32 v63, v61, 12, v63")
    a("v_lshl_add_u32 v%d, v%d, 8, v63" % (vST, vG))
    a("v_mov_b32 v%d, v%d" % (vST2, vST))
    a("s_lshl_b32 s%d, s%d, 11" % (sT1, sT1))
    a("s_add_u32 s%d, s%d, s%d" % (sOUT, sOUT, sT1))
    a("s_cmp_eq_u32 s%d, 0" % sTYPE)
    a.csel(sT1, KX, QX)
    a("s_add_u32 s%d, s%d, s%d" % (sOUT, sOUT, sT1))
    a("s_branch %s" % Lj)
    a.label(Lv)
    a("v_lshlrev_b32 v63, 4, v%d" % vN)
    a("v_lshl_add_u32 v%d, v%d, 10, v63" % (vST, vG))
    a("v_add_u32 v%d, 4096, v%d" % (vST2, vST))
    a("s_lshl_b32 s%d, s%d, 9" % (sT1, sT1))
    a("s_add_u32 s%d, s%d, s%d" % (sOUT, sOUT, sT1))
    a("s_add_u32 s%d, s%d, 0x%x" % (sOUT, sOUT, VX))
    a("s_branch %s" % Lj)
    a.label(Lh)
    a("v_lshlrev_b32 v63, 4, v62")
    a("v_lshl_add_u32 v%d, v%d, 9, v63" % (vST, vG))
    a("v_mov_b32 v%d, v%d" % (vST2, vST))
    a("s_mov_b32 s%d, %d" % (sSEG, 192 * 512))
    a("s_mul_i32 s%d, s%d, %d" % (sOUT, sJ, 2 * 192 * 512))
    a("s_lshl_b32 s%d, s%d, 6" % (sT1, sCOL0))
    a("s_add_u32 s%d, s%d, s%d" % (sOUT, sOUT, sT1))
    a("s_add_u32 s%d, s%d, 0x%x" % (sOUT, sOUT, HH))
    a.label(Lj)
    for batch in range(8):
        if batch + 1 < 8:
            if batch == 0:
                a("s_waitcnt vmcnt(31)")
            issue(batch + 1)
            a("s_waitcnt vmcnt(32)")
        else:
            a("s_waitcnt vmcnt(0)")
        for q in range(4):
            ks = batch * 4 + q
            src = ACC + (batch & 1) * 32 + q * 8
            for m in range(4):
                a("v_perm_b32 v%d, v%d, v%d, s%d" % (PK + 2 * m, src + 2 * m + 1, src + 2 * m, sSEL0))
                a("v_perm_b32 v%d, v%d, v%d, s%d" % (PK + 2 * m + 1, src + 2 * m + 1, src + 2 * m, sSEL1))
            for m in range(4):
                a("v_accvgpr_write_b32 a%d, v%d" % (wfrag(0, ks) + m, PK + 2 * m))
                a("v_accvgpr_write_b32 a%d, v%d" % (wfrag(1, ks) + m, PK + 2 * m + 1))
    Lv2, Lh2 = a.newlabel("P1V"), a.newlabel("P1H")
    a("s_cmp_eq_u32 s%d, 1" % sTYPE)
    a("s_cbranch_scc1 %s" % Lv2)
    a("s_cmp_eq_u32 s%d, 3" % sTYPE)
    a("s_cbranch_scc1 %s" % Lh2)
    p1_mainloop(a, 'kq', done_hook)
    a("s_branch %s" % Lend)
    a.label(Lv2)
    p1_mainloop(a, 'v', done_hook)
    a("s_branch %s" % Lend)
    a.label(Lh2)
    a("v_lshlrev_b32 v61, 4, v%d" % vG)
    a("s_lshl_b32 s%d, s%d, 1" % (sT0, sCOL0))
    for i in range(4):
        a("buffer_load_dwordx4 %s, v61, %s, s%d offen offset:%d" % (vr(PK + 4 * i, 4), sr(S_B1, 4), sT0, 32 * i))
    a("s_mov_b32 s%d, 0x%x" % (sK1, 0x3dd2d3e3))
    import struct
    k0 = 2.0 * 0.7978845608028654 * 1.4426950408889634
    k1 = k0 * 0.044715
    f2u = lambda f: struct.unpack("<I", struct.pack("<f", f))[0]
    a("s_mov_b32 s%d, 0x%x" % (sK1, f2u(k1)))
    a("v_mov_b32 v%d, 0x%x" % (GT + 8, f2u(k0)))
    a("s_waitcnt vmcnt(0)")
    for r in range(16):
        a("v_lshlrev_b32 v%d, 16, v%d" % (BIAS + r, PK + r))
        a("v_and_b32 v%d, 0xffff0000, v%d" % (BIAS + 16 + r, PK + r))
    p1_mainloop(a, 'h', done_hook)
    a("s_branch %s" % Lend)
```

```python
import struct
from asmlib import *
from layout import *
from p1 import srd, srd_fin

f2u = lambda f: struct.unpack("<I", struct.pack("<f", f))[0]
CSCALE = (128.0 ** -0.5) * 1.4426950408889634

S_WO, S_W2, S_WS, S_OUT, S_B2 = 4, 8, 12, 16, 20
sG, sMU, sW, sSEL0, sSEL1, sT0, sT1, sT2, sSEG, sC, sHD, sTQ, sSPIN = 24, 25, 26, 27, 28, 29, 30, 31, 32, 33, 34, 35, 36
sB0, sB1, sB2_ = 37, 38, 39
sMASK = 40
W2R = 168
vL, vL16, vVX, vOST, vSTR, vRED, vGT, vOUT = 1, 2, 3, 4, 5, 6, 7, 8
B2R = 148
QF, KXF, VXF, KMF, VMF, S0, SM, PX, PM = 16, 32, 64, 96, 112, 128, 136, 140, 144
OACC = 32
T0, T1, vMC, vZ = 146, 147, 156, 157
LAND, ACCA, ACCF = 16, 80, 96


def wo(tau, ks):
    return ar((ks * 2 + tau) * 4, 4)


def w2(tau, ks):
    return vr(W2R + (ks * 2 + tau) * 4, 4)


def p34_setup(a, sX, sR, load_weights=True):
    a.c("---- attention / output stage set-up ----")
    for s, ka in ((S_WO, KA_WO), (S_W2, KA_W2), (S_WS, KA_WS), (S_OUT, KA_OUT), (S_B2, KA_B2)):
        srd(a, s, ka, 0)
    a("s_sub_u32 s%d, s%d, 1" % (sG, sX))
    a("s_lshl_b32 s%d, s%d, 1" % (sG, sG))
    a("s_lshr_b32 s%d, s%d, 4" % (sT0, sR))
    a("s_add_u32 s%d, s%d, s%d" % (sG, sG, sT0))
    a("s_and_b32 s%d, s%d, 15" % (sMU, sR))
    a("v_lshrrev_b32 v16, 6, v0")
    a("v_and_b32 v%d, 63, v0" % vL)
    a("v_readfirstlane_b32 s%d, v16" % sW)
    a("s_mov_b32 s%d, 0x%x" % (sSEL0, SEL_LO))
    a("s_mov_b32 s%d, 0x%x" % (sSEL1, SEL_HI))
    a("s_mov_b32 s%d, 0x%x" % (sC, f2u(CSCALE)))
    a("v_and_b32 v17, 15, v%d" % vL)
    a("v_lshrrev_b32 v18, 4, v%d" % vL)
    a("s_waitcnt lgkmcnt(0)")
    srd_fin(a, S_WO, 4 * MB)
    srd_fin(a, S_W2, 1376 * 1024)
    srd_fin(a, S_WS, WS_BYTES)
    srd_fin(a, S_OUT, 2048 * 1024)
    srd_fin(a, S_B2, 1024)
    c, g = 17, 18
    a("s_lshl_b32 s%d, s%d, 2" % (sT0, sMU))
    a("s_add_u32 s%d, s%d, s%d" % (sT0, sT0, sW))
    a("s_lshr_b32 s%d, s%d, 1" % (sHD, sT0))
    a("s_and_b32 s%d, s%d, 1" % (sTQ, sT0))
    a("v_lshlrev_b32 v%d, 4, v%d" % (vL16, vL))
    a("v_lshlrev_b32 v19, 4, v%d" % c)
    a("v_lshl_add_u32 v%d, v%d, 10, v19" % (vVX, g))
    a("v_lshl_add_u32 v%d, v%d, 9, v19" % (vSTR, g))
    a("s_lshl_b32 s%d, s%d, 8" % (sT0, sTQ))
    a("v_add_u32 v%d, s%d, v%d" % (vOST, sT0, vSTR))
    a("v_lshrrev_b32 v20, 3, v%d" % c)
    a("v_and_b32 v21, 7, v%d" % c)
    a("v_lshl_add_u32 v20, v20, 4, v21")
    a("s_lshl_b32 s%d, s%d, 3" % (sT0, sTQ))
    a("v_add_u32 v21, s%d, v20" % sT0)
    a("v_lshrrev_b32 v22, 1, v%d" % g)
    a("v_and_b32 v23, 1, v%d" % g)
    a("v_lshlrev_b32 v23, 2, v23")
    a("v_lshl_add_u32 v22, v22, 4, v23")
    a("v_sub_u32 v21, v21, v22")
    for T in range(2):
        for j in range(4):
            a("v_cmp_le_i32 %s, %d, v21" % (sr(sMASK + 2 * (T * 4 + j), 2), 8 * T + j))
    a("s_and_b32 s%d, s%d, 1" % (sT0, sW))
    a("s_lshl_b32 s%d, s%d, 3" % (sT1, sT0))
    a("v_add_u32 v20, s%d, v20" % sT1)
    a("v_lshlrev_b32 v%d, 2, v20" % vGT)
    a("v_lshlrev_b32 v20, 10, v20")
    a("v_lshl_add_u32 v20, v%d, 4, v20" % g)
    a("s_lshl_b32 s%d, s%d, 6" % (sT1, sMU))
    a("v_add_u32 v%d, s%d, v20" % (vOUT, sT1))
    a("s_lshl_b32 s%d, s%d, 11" % (sT0, sT0))
    a("v_add_u32 v%d, s%d, v%d" % (vRED, sT0, vL16))
    if not load_weights:
        return
    a("v_lshlrev_b32 v20, 4, v%d" % g)
    a("buffer_load_dwordx4 v[24:27], v20, %s, s%d offen" % (sr(S_B2, 4), sT1))
    a("v_lshlrev_b32 v21, 2, v%d" % c)
    a("v_lshl_add_u32 v21, v%d, 13, v21" % g)
    a("v_add_u32 v21, s%d, v21" % sT1)
    a("v_add_u32 v22, 4096, v21")
    steps = [('o', ks) for ks in range(32)] + [('f', ks) for ks in range(11)]
    batches = [steps[i:i + 4] for i in range(0, len(steps), 4)]
    a("s_lshl_b32 s%d, s%d, 20" % (sB0, sW))
    a("s_mul_i32 s%d, s%d, %d" % (sB1, sW, 352 * 1024))
    LD = [32, 64]
    TMP = 96

    def issue(bi):
        for q, (kind, ks) in enumerate(batches[bi]):
            a("s_add_u32 s%d, s%d, %d" % (sT0, sB0 if kind == 'o' else sB1, ks * 32768))
            for jj in range(8):
                if q == 3 and jj == 7:
                    a("s_waitcnt vmcnt(62)")
                a("buffer_load_dword v%d, v%d, %s, s%d offen offset:%d" % (LD[bi & 1] + q * 8 + jj, 21 + (jj >> 2), sr(S_WO if kind == 'o' else S_W2, 4), sT0, (jj & 3) * 1024))

    issue(0)
    for bi in range(len(batches)):
        if bi + 1 < len(batches):
            if bi == 0:
                a("s_waitcnt vmcnt(31)")
                for j in range(4):
                    a("v_lshlrev_b32 v%d, 16, v%d" % (B2R + 2 * j, 24 + j))
                    a("v_and_b32 v%d, 0xffff0000, v%d" % (B2R + 2 * j + 1, 24 + j))
            issue(bi + 1)
            a("s_waitcnt vmcnt(%d)" % (8 * len(batches[bi + 1])))
        else:
            a("s_waitcnt vmcnt(0)")
        for q, (kind, ks) in enumerate(batches[bi]):
            src = LD[bi & 1] + q * 8
            for tau in range(2):
                for m in range(4):
                    dst = TMP + tau * 4 + m if kind == 'o' else W2R + (ks * 2 + tau) * 4 + m
                    a("v_perm_b32 v%d, v%d, v%d, s%d" % (dst, src + 2 * m + 1, src + 2 * m, sSEL1 if tau else sSEL0))
            if kind == 'o':
                for x in range(8):
                    a("v_accvgpr_write_b32 a%d, v%d" % (ks * 8 + x, TMP + x))


def attn_pre(a):
    a("s_lshl_b32 s%d, s%d, 18" % (sB0, sSEG))
    a("s_lshl_b32 s%d, s%d, 13" % (sT0, sHD))
    a("s_add_u32 s%d, s%d, s%d" % (sB0, sB0, sT0))
    a("s_lshl_b32 s%d, s%d, 12" % (sT0, sTQ))
    a("s_add_u32 s%d, s%d, s%d" % (sT0, sT0, sB0))
    a("s_add_u32 s%d, s%d, 0x%x" % (sT0, sT0, QX))
    for ks in range(4):
        a("buffer_load_dwordx4 %s, v%d, %s, s%d offen offset:%d sc1" % (vr(QF + 4 * ks, 4), vL16, sr(S_WS, 4), sT0, ks * 1024))
    for T in range(2):
        a("s_add_u32 s%d, s%d, 0x%x" % (sT0, sB0, KX + T * 4096))
        for ks in range(4):
            a("buffer_load_dwordx4 %s, v%d, %s, s%d offen offset:%d sc1" % (vr(KXF + (T * 4 + ks) * 4, 4), vL16, sr(S_WS, 4), sT0, ks * 1024))
    for tau in range(2):
        a("s_add_u32 s%d, s%d, 0x%x" % (sT0, sB0, VX + tau * 4096))
        for w in range(4):
            a("buffer_load_dwordx4 %s, v%d, %s, s%d offen offset:%d sc1" % (vr(VXF + (w * 2 + tau) * 4, 4), vVX, sr(S_WS, 4), sT0, w * 256))


def attn_post(a):
    a("s_lshl_b32 s%d, s%d, 17" % (sB1, sSEG))
    a("s_lshl_b32 s%d, s%d, 12" % (sT0, sHD))
    a("s_add_u32 s%d, s%d, s%d" % (sB1, sB1, sT0))
    a("s_add_u32 s%d, s%d, 0x%x" % (sT0, sB1, KM))
    for ks in range(4):
        a("buffer_load_dwordx4 %s, v%d, %s, s%d offen offset:%d sc1" % (vr(KMF + 4 * ks, 4), vL16, sr(S_WS, 4), sT0, ks * 1024))
    a("s_add_u32 s%d, s%d, 0x%x" % (sT0, sB1, VM))
    for w in range(4):
        a("buffer_load_dwordx4 %s, v%d, %s, s%d offen offset:%d sc1" % (vr(VMF + 4 * w, 4), vL16, sr(S_WS, 4), sT0, w * 1024))
    a("s_waitcnt vmcnt(8)")
    for ks in range(4):
        for T in range(2):
            d = vr(S0 + 4 * T, 4)
            a("v_mfma_f32_16x16x32_bf16 %s, %s, %s, %s" % (d, vr(KXF + (T * 4 + ks) * 4, 4), vr(QF + 4 * ks, 4), "0" if ks == 0 else d))
    a("v_mov_b32 v%d, 0xff7fffff" % T1)
    a("s_waitcnt vmcnt(4)")
    for ks in range(4):
        d = vr(SM, 4)
        a("v_mfma_f32_16x16x32_bf16 %s, %s, %s, %s" % (d, vr(KMF + 4 * ks, 4), vr(QF + 4 * ks, 4), "0" if ks == 0 else d))
    for i in range(8):
        a("v_cndmask_b32 v%d, v%d, v%d, %s" % (S0 + i, T1, S0 + i, sr(sMASK + 2 * i, 2)))
    a("v_max3_f32 v%d, v%d, v%d, v%d" % (T0, S0, S0 + 1, S0 + 2))
    a("v_max3_f32 v%d, v%d, v%d, v%d" % (T0, T0, S0 + 3, S0 + 4))
    a("v_max3_f32 v%d, v%d, v%d, v%d" % (T0, T0, S0 + 5, S0 + 6))
    a("v_max3_f32 v%d, v%d, v%d, v%d" % (T0, T0, S0 + 7, SM))
    a("v_max3_f32 v%d, v%d, v%d, v%d" % (T0, T0, SM + 1, SM + 2))
    a("v_max_f32 v%d, v%d, v%d" % (T0, T0, SM + 3))
    for sw in ("32", "16"):
        a("v_mov_b32 v%d, v%d" % (T1, T0))
        a("v_permlane%s_swap_b32 v%d, v%d" % (sw, T0, T1))
        a("v_max_f32 v%d, v%d, v%d" % (T0, T0, T1))
    a("v_mul_f32 v%d, s%d, v%d" % (vMC, sC, T0))
    for i in range(12):
        a("v_fma_f32 v%d, v%d, s%d, -v%d" % (S0 + i, S0 + i, sC, vMC))
    for i in range(12):
        a("v_exp_f32 v%d, v%d" % (S0 + i, S0 + i))
    for i in range(6):
        a("v_cvt_pk_bf16_f32 v%d, v%d, v%d" % (PX + i, S0 + 2 * i, S0 + 2 * i + 1))
    a("s_waitcnt vmcnt(0)")
    for n in range(8):
        a("v_mfma_f32_16x16x32_bf16 %s, %s, %s, 0" % (vr(OACC + 4 * n, 4), vr(VXF + 4 * n, 4), vr(PX, 4)))
        if n == 0:
            a("v_add_f32 v%d, v%d, v%d" % (T0, SM, SM + 1))
            a("v_add_f32 v%d, v%d, v%d" % (T1, SM + 2, SM + 3))
        elif n == 1:
            a("v_add_f32 v%d, v%d, v%d" % (T0, T0, T1))
            a("v_mul_f32 v%d, 0.5, v%d" % (vZ, T0))
        elif n < 6:
            a("v_add_f32 v%d, v%d, v%d" % (vZ, vZ, S0 + 2 * (n - 2)))
            a("v_add_f32 v%d, v%d, v%d" % (vZ, vZ, S0 + 2 * (n - 2) + 1))
    for n in range(8):
        d = vr(OACC + 4 * n, 4)
        a("v_mfma_f32_16x16x16_bf16 %s, %s, %s, %s" % (d, vr(VMF + 2 * n, 2), vr(PM, 2), d))
    for sw in ("32", "16"):
        a("v_mov_b32 v%d, v%d" % (T1, vZ))
        a("v_permlane%s_swap_b32 v%d, v%d" % (sw, vZ, T1))
        a("v_add_f32 v%d, v%d, v%d" % (vZ, vZ, T1))
    a("v_rcp_f32 v%d, v%d" % (vZ, vZ))
    a("s_add_u32 s%d, s%d, 0x%x" % (sT0, sB0, OO))
    a("s_add_u32 s%d, s%d, 4096" % (sT1, sT0))
    for w in range(4):
        b = OACC + 8 * w
        for i in range(8):
            a("v_mul_f32 v%d, v%d, v%d" % (b + i, b + i, vZ))
        for j in range(4):
            a("v_cvt_pk_bf16_f32 v%d, v%d, v%d" % (QF + 4 * w + j, b + j, b + 4 + j))
        a("buffer_store_dwordx4 %s, v%d, %s, s%d offen offset:%d sc1" % (vr(QF + 4 * w, 4), vOST, sr(S_WS, 4), sT1 if w >= 2 else sT0, (w & 1) * 2048))


def stream_gemm(a, nks, wf, accb, sbase):
    DEPTH = 8

    def ld(ks):
        if ks % 2 == 0:
            a("s_add_u32 s%d, s%d, %d" % (sT0, sbase, ks * 2048))
        for Tt in range(2):
            a("buffer_load_dwordx4 %s, v%d, %s, s%d offen offset:%d sc1" % (vr(LAND + ((ks % DEPTH) * 2 + Tt) * 4, 4), vSTR, sr(S_WS, 4), sT0, (ks & 1) * 2048 + Tt * 256))
    for ks in range(min(DEPTH, nks)):
        ld(ks)
    for ks in range(nks):
        a("s_waitcnt vmcnt(%d)" % (2 * min(DEPTH - 1, nks - 1 - ks)))
        for Tt in range(2):
            for tau in range(2):
                d = vr(accb + (Tt * 2 + tau) * 4, 4)
                a("v_mfma_f32_16x16x32_bf16 %s, %s, %s, %s" % (d, wf(tau, ks), vr(LAND + ((ks % DEPTH) * 2 + Tt) * 4, 4), "0" if ks == 0 else d))
        if ks + DEPTH < nks:
            ld(ks + DEPTH)


def ffn2(a):
    a("s_mul_i32 s%d, s%d, %d" % (sB2_, sSEG, 192 * 512))
    a("s_mul_i32 s%d, s%d, %d" % (sT0, sW, 44 * 512))
    a("s_add_u32 s%d, s%d, s%d" % (sB2_, sB2_, sT0))
    a("s_add_u32 s%d, s%d, 0x%x" % (sB2_, sB2_, HH))
    stream_gemm(a, 11, w2, ACCF, sB2_)


def rnd2(a, x, y, t):
    a("v_cvt_pk_bf16_f32 v%d, v%d, v%d" % (t, x, y))
    a("v_lshlrev_b32 v%d, 16, v%d" % (x, t))
    a("v_and_b32 v%d, 0xffff0000, v%d" % (y, t))


def outproj(a):
    a("s_lshl_b32 s%d, s%d, 18" % (sB2_, sSEG))
    a("s_lshl_b32 s%d, s%d, 16" % (sT0, sW))
    a("s_add_u32 s%d, s%d, s%d" % (sB2_, sB2_, sT0))
    a("s_add_u32 s%d, s%d, 0x%x" % (sB2_, sB2_, OO))
    stream_gemm(a, 32, wo, ACCA, sB2_)
    a("s_lshl_b32 s%d, s%d, 7" % (sT0, sSEG))
    a("s_add_u32 s%d, s%d, 0x%x" % (sT0, sT0, GATE))
    a("buffer_load_dword v112, v%d, %s, s%d offen sc1" % (vGT, sr(S_WS, 4), sT0))
    a("s_lshl_b32 s%d, s%d, 13" % (sT0, sW))
    a("v_add_u32 v113, s%d, v%d" % (sT0, vL16))
    for i in range(4):
        a("ds_write_b128 v113, %s offset:%d" % (vr(ACCF + 4 * i, 4), 4096 + i * 1024))
    for i in range(4):
        a("ds_write_b128 v113, %s offset:%d" % (vr(ACCA + 4 * i, 4), i * 1024))
    a("s_waitcnt lgkmcnt(0)")
    a("s_barrier")
    Lsk = a.newlabel("FINSK")
    a("s_cmp_ge_u32 s%d, 2" % sW)
    a("s_cbranch_scc1 %s" % Lsk)
    R = 16
    for w in range(4):
        for af in range(2):
            for tau in range(2):
                a("ds_read_b128 %s, v%d offset:%d" % (vr(R + ((w * 2 + af) * 2 + tau) * 4, 4), vRED, w * 8192 + af * 4096 + tau * 1024))
    a("s_waitcnt lgkmcnt(0)")
    for i in range(0, 16, 2):
        a("v_pk_add_f32 %s, %s, %s" % (vr(R + i, 2), vr(R + i, 2), vr(R + 16 + i, 2)))
        a("v_pk_add_f32 %s, %s, %s" % (vr(R + 32 + i, 2), vr(R + 32 + i, 2), vr(R + 48 + i, 2)))
    for i in range(0, 16, 2):
        a("v_pk_add_f32 %s, %s, %s" % (vr(R + i, 2), vr(R + i, 2), vr(R + 32 + i, 2)))
    A0, A1, F0, F1, t = R, R + 4, R + 8, R + 12, R + 16
    a("s_waitcnt vmcnt(0)")
    a("v_sub_f32 v114, 1.0, v112")
    a("v_cvt_pk_bf16_f32 v114, v114, v114")
    a("v_lshlrev_b32 v114, 16, v114")
    for j in range(4):
        rnd2(a, A0 + j, A1 + j, t)
        rnd2(a, F0 + j, F1 + j, t + 1)
        a("v_add_f32 v%d, v%d, v%d" % (F0 + j, F0 + j, B2R + 2 * j))
        a("v_add_f32 v%d, v%d, v%d" % (F1 + j, F1 + j, B2R + 2 * j + 1))
        rnd2(a, F0 + j, F1 + j, t + 1)
        a("v_mul_f32 v%d, v112, v%d" % (A0 + j, A0 + j))
        a("v_mul_f32 v%d, v112, v%d" % (A1 + j, A1 + j))
        a("v_mul_f32 v%d, v114, v%d" % (F0 + j, F0 + j))
        a("v_mul_f32 v%d, v114, v%d" % (F1 + j, F1 + j))
        rnd2(a, A0 + j, A1 + j, t)
        rnd2(a, F0 + j, F1 + j, t + 1)
        a("v_add_f32 v%d, v%d, v%d" % (A0 + j, A0 + j, F0 + j))
        a("v_add_f32 v%d, v%d, v%d" % (A1 + j, A1 + j, F1 + j))
        a("v_cvt_pk_bf16_f32 v%d, v%d, v%d" % (t + 4 + j, A0 + j, A1 + j))
    a("s_lshl_b32 s%d, s%d, 15" % (sT0, sSEG))
    a("buffer_store_dwordx4 %s, v%d, %s, s%d offen" % (vr(t + 4, 4), vOUT, sr(S_OUT, 4), sT0))
    a.label(Lsk)
    a("s_waitcnt vmcnt(0)")
    a("s_barrier")
```

```python
import sys
from asmlib import *
from layout import *
import p1, chain, p34

NAME = "gated_mix__memory_aug_recurrent_mem_tr__dense_activation_gelu__prompt"
HEAD = open("cdna_kernels/%s.s.ref" % NAME).read().split("; Override launch")[0]


def kd(name, vgpr=512, sgpr=102):
    return """.section .rodata,"a"
.p2align 6
.amdhsa_kernel %s
  .amdhsa_next_free_vgpr %d
  .amdhsa_next_free_sgpr %d
  .amdhsa_accum_offset 256
  .amdhsa_group_segment_fixed_size 0
  .amdhsa_kernarg_size 128
  .amdhsa_user_sgpr_count 2
  .amdhsa_user_sgpr_kernarg_segment_ptr 1
  .amdhsa_system_sgpr_workgroup_id_x 1
.end_amdhsa_kernel
""" % (name, vgpr, sgpr)


def kstart(a, name):
    a.raw(".text")
    a.raw(".globl %s" % name)
    a.raw(".p2align 8")
    a.raw(".type %s,@function" % name)
    a.label(name)


sX, sR = 64, 65


def static_role(a, Lend):
    a("s_cmp_ge_u32 s2, 256")
    a("s_cbranch_scc1 %s" % Lend)
    a("s_and_b32 s%d, s2, 7" % sX)
    a("s_lshr_b32 s%d, s2, 3" % sR)
    a("s_cmp_eq_u32 s%d, 0" % sX)
    a("s_cbranch_scc1 %s" % Lend)


def dev_multi(stamps=False, safe=False):
    a = Asm()
    names = ["p1_kernel", "chain_kernel", "attn_kernel", "out_kernel"]
    kstart(a, names[0])
    static_role(a, "P1END")
    p1.phase1(a, sX, sR, "P1END")
    a.label("P1END")
    a("s_endpgm")
    kstart(a, names[1])
    a("s_cmp_ge_u32 s2, 256")
    a("s_cbranch_scc1 CEND")
    if safe:
        a("s_cmp_ge_u32 s2, 32")
        a("s_cbranch_scc1 CEND")
        a("s_mov_b32 s%d, s2" % sR)
    else:
        a("s_getreg_b32 s%d, hwreg(HW_REG_XCC_ID)" % sX)
        a("s_and_b32 s%d, s%d, 15" % (sX, sX))
        a("s_cmp_lg_u32 s%d, 0" % sX)
        a("s_cbranch_scc1 CEND")
        a("s_load_dwordx2 s[4:5], s[0:1], %d" % KA_DBG)
        a("s_waitcnt lgkmcnt(0)")
        p1.srd_fin(a, 4, 256)
        a("v_mov_b32 v1, 1")
        a("v_mov_b32 v2, 0x%x" % OOB)
        a("v_cmp_eq_u32 vcc, 0, v0")
        a("v_cndmask_b32 v2, v2, 0, vcc")
        a("buffer_atomic_add v1, v2, s[4:7], 0 offen sc0")
        a("s_waitcnt vmcnt(0)")
        a("v_mov_b32 v2, 0")
        a("ds_write_b32 v2, v1")
        a.lines.pop()
        a("v_cmp_eq_u32 vcc, 0, v0")
        a("s_and_saveexec_b64 s[8:9], vcc")
        a("ds_write_b32 v2, v1")
        a("s_mov_b64 exec, s[8:9]")
        a("s_waitcnt lgkmcnt(0)")
        a("s_barrier")
        a("ds_read_b32 v1, v2")
        a("s_waitcnt lgkmcnt(0)")
        a("v_readfirstlane_b32 s%d, v1" % sR)
        a("s_barrier")
        a("s_cmp_ge_u32 s%d, 32" % sR)
        a("s_cbranch_scc1 CEND")
    sc = " sc1" if safe else ""
    chain.chain_setup(a, sR, sc)
    chain.chain_loop(a, sc, "CEND", stamps=stamps)
    a.label("CEND")
    a("s_endpgm")
    kstart(a, names[2])
    static_role(a, "ATEND")
    p34.p34_setup(a, sX, sR, load_weights=False)
    a("s_mov_b32 s%d, s%d" % (p34.sSEG, p34.sG))
    a.label("ATL")
    p34.attn_pre(a)
    p34.attn_post(a)
    a("s_add_u32 s%d, s%d, 14" % (p34.sSEG, p34.sSEG))
    a("s_cmp_lt_u32 s%d, 64" % p34.sSEG)
    a("s_cbranch_scc1 ATL")
    a.label("ATEND")
    a("s_endpgm")
    kstart(a, names[3])
    static_role(a, "OUEND")
    p34.p34_setup(a, sX, sR)
    a("s_mov_b32 s%d, s%d" % (p34.sSEG, p34.sG))
    a.label("OUL")
    p34.ffn2(a)
    p34.outproj(a)
    a("s_add_u32 s%d, s%d, 14" % (p34.sSEG, p34.sSEG))
    a("s_cmp_lt_u32 s%d, 64" % p34.sSEG)
    a("s_cbranch_scc1 OUL")
    a.label("OUEND")
    a("s_endpgm")
    launch = "".join("; @launch kernel=%s grid=(256,1,1) block=(256,1,1) lds=163840\n" % n for n in names)
    return a, launch, names


def finish(a, launch, names, path):
    rep = []
    a.lines = autopad(a.lines, rep)
    body = a.text()
    errs = check(body)
    for e in errs:
        print(e)
    if "-v" in sys.argv:
        for r in rep:
            print("pad", r)
    txt = HEAD + launch + '.amdgcn_target "amdgcn-amd-amdhsa--gfx950"\n' + body + "".join(kd(n) for n in names)
    open(path, "w").write(txt)
    print("wrote", path, len(txt), "bytes;", len(rep), "pads;", len(errs), "errors")


if __name__ == "__main__":
    mode = sys.argv[1]
    out = sys.argv[2]
    if mode == "multi":
        finish(*dev_multi(stamps="-s" in sys.argv, safe="-safe" in sys.argv), out)
```
